```python
import torch

def _softmax(x, axis=-1):
    return torch.softmax(x, dim=axis)
def _gelu(x):
    return torch.nn.functional.gelu(x, approximate="tanh")
def _silu(x):
    return torch.nn.functional.silu(x)
def _sigmoid(x):
    return torch.sigmoid(x)
def _layernorm(x, axis=-1, eps=1e-5):
    m = x.mean(dim=axis, keepdim=True)
    v = x.var(dim=axis, keepdim=True, unbiased=False)
    return (x - m) / torch.sqrt(v + eps)
def _scatter_add(tgt, idx, src, axis=0):
    return tgt.clone().index_add_(axis, idx, src)
def _segment_sum(src, seg, n):
    out = torch.zeros((n,) + src.shape[1:], dtype=src.dtype)
    return out.index_add_(0, seg, src)
def _pad(x, pw):
    flat = tuple(v for pair in reversed(pw) for v in pair)
    return torch.nn.functional.pad(x, flat)

kernel_name = 'recurrent_scan__sliding_block__dense_activation_squared_relu__prompt'

def setup_inputs():

    _w = (lambda a: (lambda t: t.to(torch.bfloat16) if t.is_floating_point() else t)(torch.as_tensor(a)))
    def _A_setup():
        B, S, D = 1, 2048, 1024
        return {
            "x": _w((lambda *s: torch.randn(*s, dtype=torch.bfloat16) * 0.05)(B, S, D)),
            "wqkv": _w((lambda *s: torch.randn(*s, dtype=torch.bfloat16) * 0.05)(D, 3 * D)),
            "wo": _w((lambda *s: torch.randn(*s, dtype=torch.bfloat16) * 0.05)(D, D)),
        }
    _A_in = _A_setup()

    def _B_setup():
        B, S, D, F = 1, 2048, 1024, 3584
        return {
            "x": _w((lambda *s: torch.randn(*s, dtype=torch.bfloat16) * 0.05)(B, S, D)),
            "w1": _w((lambda *s: torch.randn(*s, dtype=torch.bfloat16) * 0.05)(D, F)),
            "b1": _w((lambda *s: torch.randn(*s, dtype=torch.bfloat16) * 0.4)(F)),
            "w2": _w((lambda *s: torch.randn(*s, dtype=torch.bfloat16) * 0.05)(F, D)),
            "b2": _w((lambda *s: torch.randn(*s, dtype=torch.bfloat16) * 3.2)(D)),
        }
    _B_in = _B_setup()

    return {
        "A_x": _A_in["x"],
        "A_wqkv": _A_in["wqkv"],
        "A_wo": _A_in["wo"],
        "B_x": _B_in["x"],
        "B_w1": _B_in["w1"],
        "B_b1": _B_in["b1"],
        "B_w2": _B_in["w2"],
        "B_b2": _B_in["b2"],
    }

def reference(A_x, A_wqkv, A_wo, B_x, B_w1, B_b1, B_w2, B_b2):
    def _A_ref(x, wqkv, wo):
        B, S, D = x.shape
        H = 32; Dh = D // H; W = 256
        qkv = (lambda x, *d: x.permute(*d))((x @ wqkv).reshape(B, S, 3, H, Dh), 2, 0, 3, 1, 4)
        q, k, v = qkv[0], qkv[1], qkv[2]
        scores = torch.einsum("bhqd,bhkd->bhqk", q, k) * (Dh ** -0.5)
        idx = torch.arange(S)
        mask = (idx[:, None] - idx[None, :] >= 0) & (idx[:, None] - idx[None, :] < W)
        scores = torch.where(mask[None, None], scores, -1e9)
        p = _softmax(scores, axis=-1)
        o = torch.einsum("bhqk,bhkd->bhqd", p, v)
        return (lambda x, *d: x.permute(*d))(o, 0, 2, 1, 3).reshape(B, S, D) @ wo

    def _B_ref(x, w1, b1, w2, b2):
        h = torch.einsum("bsd,df->bsf", x, w1) + b1
        zero = torch.zeros_like(h)
        r = torch.where(h > zero, h, zero)
        h = r * r
        out = torch.einsum("bsf,fd->bsd", h, w2) + b2
        return out

    x = A_x
    xn = _layernorm(x, axis=-1)
    s = _A_ref(xn, A_wqkv, A_wo)
    g = _silu(_B_ref(xn, B_w1, B_b1, B_w2, B_b2))
    return x + s * g
```

```python
import sys
sys.path.insert(0, "dev")
import layout as L

NAME = "recurrent_scan__sliding_block__dense_activation_squared_relu__prompt"
HEADER = open("cdna_kernels/%s.s.ref" % NAME).read().split("; Override launch")[0]

KA = dict(x=0, wqkv=8, wo=16, bx=24, w1=32, b1=40, w2=48, b2=56, out=64, dbg=72, ws=80)


class A:
    def __init__(s):
        s.l = []
        s.nlab = 0

    def __call__(s, t):
        for line in t.strip("\n").split("\n"):
            s.l.append("    " + line.strip())

    def lab(s, n):
        s.l.append(n + ":")

    def c(s, t):
        s.l.append("    ; " + t)

    def text(s):
        return "\n".join(s.l) + "\n"


def vr(b, n=1, p="v"):
    return "%s%d" % (p, b) if n == 1 else "%s[%d:%d]" % (p, b, b + n - 1)


def ar(b, n=1):
    return vr(b, n, "a")


def srd(a, d, lo, hi, nrec):
    a("s_mov_b32 s%d, s%d" % (d, lo))
    a("s_and_b32 s%d, s%d, 0xffff" % (d + 1, hi))
    a("s_mov_b32 s%d, %s" % (d + 2, nrec))
    a("s_mov_b32 s%d, 0x00020000" % (d + 3))


def kernel_begin(a, name):
    a.l.append(".p2align 8")
    a.l.append(".globl %s" % name)
    a.l.append(".type %s,@function" % name)
    a.lab(name)


def kd(name, vgpr, accum, sgpr=96):
    return """.amdhsa_kernel %s
  .amdhsa_next_free_vgpr %d
  .amdhsa_next_free_sgpr %d
  .amdhsa_accum_offset %d
  .amdhsa_group_segment_fixed_size 0
  .amdhsa_kernarg_size 88
  .amdhsa_user_sgpr_count 2
  .amdhsa_user_sgpr_kernarg_segment_ptr 1
  .amdhsa_system_sgpr_workgroup_id_x 1
.end_amdhsa_kernel
""" % (name, vgpr, sgpr, accum)


def round_bf16(a, v):
    a("v_cvt_pk_bf16_f32 v%d, v%d, v%d" % (v, v, v))
    a("v_lshlrev_b32 v%d, 16, v%d" % (v, v))


def gen_ln(a, name, opts=None):
    opts = opts or {}
    kernel_begin(a, name)
    a("s_cmp_ge_u32 s2, 128")
    a("s_cbranch_scc1 %s_%s" % (name, "pf" if opts.get("lnpf") else "end"))
    a("s_load_dwordx2 s[4:5], s[0:1], %d" % KA["x"])
    a("s_load_dwordx2 s[6:7], s[0:1], %d" % KA["ws"])
    a("""
    v_and_b32 v1, 63, v0
    v_lshrrev_b32 v2, 6, v0
    v_and_b32 v3, 15, v0
    v_lshrrev_b32 v4, 4, v1
    v_lshlrev_b32 v5, 11, v3
    v_lshl_add_u32 v5, v2, 8, v5
    v_lshl_add_u32 v5, v4, 3, v5
    s_lshl_b32 s3, s2, 15
    s_waitcnt lgkmcnt(0)
    """)
    srd(a, 8, 4, 5, str(4 << 20))
    a("s_add_u32 s6, s6, %d" % L.XN)
    a("s_addc_u32 s7, s7, 0")
    srd(a, 12, 6, 7, str(L.FL + L.FLSZ - L.XN))
    for ktl in range(4):
        for h in range(2):
            a("buffer_load_dwordx2 %s, v5, s[8:11], s3 offen offset:%d" % (vr(8 + 4 * ktl + 2 * h, 2), ktl * 64 + h * 32))
    a("""
    v_lshlrev_b32 v6, 5, v3
    v_lshl_add_u32 v7, v2, 2, v6
    v_lshlrev_b32 v60, 4, v1
    v_lshl_add_u32 v60, v2, 16, v60
    s_lshr_b32 s16, s2, 4
    s_lshl_b32 s16, s16, 19
    s_and_b32 s17, s2, 15
    s_lshl_b32 s17, s17, 10
    s_add_u32 s16, s16, s17
    s_add_u32 s17, s16, 16384
    s_add_u32 s18, s16, 32768
    s_add_u32 s19, s16, 49152
    s_mov_b32 s20, 0xffff0000
    """)
    a("v_and_b32 v61, 31, v0")
    a("v_lshlrev_b32 v61, 2, v61")
    a("v_mov_b32 v62, 0")
    a("s_mul_i32 s21, s2, %d" % L.FS)
    a("s_add_u32 s21, s21, %d" % (L.FL - L.XN))
    a("buffer_store_dword v62, v61, s[12:15], s21 offen")
    X = 24
    for i in range(16):
        if i % 2 == 0:
            a("s_waitcnt vmcnt(%d)" % (8 - i // 2))
        a("v_lshlrev_b32 v%d, 16, v%d" % (X + 2 * i, 8 + i))
        a("v_and_b32 v%d, s20, v%d" % (X + 2 * i + 1, 8 + i))

    def reduce(acc, ldsoff):
        a("v_mov_b32 v57, v%d" % acc)
        a("s_nop 1")
        a("v_permlane32_swap_b32 v57, v%d" % acc)
        a("s_nop 1")
        a("v_add_f32 v%d, v57, v%d" % (acc, acc))
        a("v_mov_b32 v57, v%d" % acc)
        a("s_nop 1")
        a("v_permlane16_swap_b32 v57, v%d" % acc)
        a("s_nop 1")
        a("v_add_f32 v%d, v57, v%d" % (acc, acc))
        a("ds_write_b32 v7, v%d offset:%d" % (acc, ldsoff))
        a("s_waitcnt lgkmcnt(0)")
        a("s_barrier")
        a("ds_read_b128 v[8:11], v6 offset:%d" % ldsoff)
        a("ds_read_b128 v[12:15], v6 offset:%d" % (ldsoff + 16))
        a("s_waitcnt lgkmcnt(0)")
        a("""
        v_add_f32 v8, v8, v9
        v_add_f32 v10, v10, v11
        v_add_f32 v12, v12, v13
        v_add_f32 v14, v14, v15
        v_add_f32 v8, v8, v10
        v_add_f32 v12, v12, v14
        """)
        a("v_add_f32 v%d, v8, v12" % acc)

    for c in range(4):
        a("v_add_f32 v%d, v%d, v%d" % (16 + c, X + c, X + 4 + c))
    for i in range(8, 32):
        a("v_add_f32 v%d, v%d, v%d" % (16 + i % 4, 16 + i % 4, X + i))
    a("v_add_f32 v16, v16, v17")
    a("v_add_f32 v18, v18, v19")
    a("v_add_f32 v56, v16, v18")
    reduce(56, 0)
    a("v_mul_f32 v56, 0x3a800000, v56")
    for c in range(4):
        a("v_sub_f32 v%d, v%d, v56" % (20, X + c))
        a("v_mul_f32 v%d, v20, v20" % (16 + c))
    for i in range(4, 32):
        a("v_sub_f32 v%d, v%d, v56" % (20 + i % 4, X + i))
        a("v_fmac_f32 v%d, v%d, v%d" % (16 + i % 4, 20 + i % 4, 20 + i % 4))
    a("v_add_f32 v16, v16, v17")
    a("v_add_f32 v18, v18, v19")
    a("v_add_f32 v58, v16, v18")
    reduce(58, 512)
    a("v_mul_f32 v58, 0x3a800000, v58")
    round_bf16(a, 56)
    round_bf16(a, 58)
    a("v_add_f32 v58, 0x3727c5ac, v58")
    round_bf16(a, 58)
    a("v_sqrt_f32 v58, v58")
    a("s_nop 0")
    round_bf16(a, 58)
    a("v_rcp_f32 v58, v58")
    for i in range(16):
        p, q = X + 2 * i, X + 2 * i + 1
        a("v_sub_f32 v%d, v%d, v56" % (p, p))
        a("v_sub_f32 v%d, v%d, v56" % (q, q))
        a("v_cvt_pk_bf16_f32 v%d, v%d, v%d" % (p, p, q))
        a("v_and_b32 v%d, s20, v%d" % (q, p))
        a("v_lshlrev_b32 v%d, 16, v%d" % (p, p))
        a("v_mul_f32 v%d, v%d, v58" % (p, p))
        a("v_mul_f32 v%d, v%d, v58" % (q, q))
        a("v_cvt_pk_bf16_f32 v%d, v%d, v%d" % (8 + i, p, q))
        if i % 4 == 3:
            a("buffer_store_dwordx4 %s, v60, s[12:15], s%d offen" % (vr(8 + i - 3, 4), 16 + i // 4))
    a.lab(name + "_end")
    a("s_endpgm")
    if opts.get("lnpf"):
        st = opts.get("pfst", 128)
        a.lab(name + "_pf")
        a("s_cmp_ge_u32 s2, 256")
        a("s_cbranch_scc1 %s_end" % name)
        a("s_load_dwordx2 s[4:5], s[0:1], %d" % KA["wqkv"])
        a("s_load_dwordx2 s[6:7], s[0:1], %d" % KA["w1"])
        a("v_mul_u32_u24 v1, %d, v0" % st)
        a("s_sub_u32 s3, s2, 128")
        a("s_mul_i32 s3, s3, %d" % (512 * st))
        a("s_waitcnt lgkmcnt(0)")
        srd(a, 8, 4, 5, str(1024 * 6144))
        srd(a, 12, 6, 7, str(1024 * 7168))
        n = (1024 * 7168 + 128 * 512 * st - 1) // (128 * 512 * st)
        n = min(n, opts.get("pfn", 99))
        for k in range(n):
            a("buffer_load_dword v%d, v1, s[8:11], s3 offen" % (2 + 2 * k))
            a("buffer_load_dword v%d, v1, s[12:15], s3 offen" % (3 + 2 * k))
            a("s_add_u32 s3, s3, %d" % (128 * 512 * st))
        if opts.get("pfwait"):
            a("s_waitcnt vmcnt(0)")
        a("s_endpgm")
    return kd(name, 64, 64, 32)


class Gemm:
    ACC0 = 32

    def __init__(s, a, tag, segs, pitch, nsteps, MI=4, D=8, vfrags=(), opts=None):
        s.a, s.tag, s.segs, s.pitch, s.nsteps, s.MI, s.D = a, tag, segs, pitch, nsteps, MI, D
        s.opts = opts or {}
        s.frs = []
        for si, t in enumerate(segs):
            for e in range(4 if t == "F" else 2):
                s.frs.append((si, e))
        s.NJ = len(s.frs)
        s.REG = len(segs) * 1024
        s.SLOT = 4 * s.REG
        s.vfrags = set(vfrags)
        s.Bst = [0, s.NJ * 4]
        s.A0 = 2 * s.NJ * 4
        s.L = MI + len(segs)
        assert s.A0 + D * MI * 4 <= 256
        assert s.ACC0 + MI * s.NJ * 4 <= 256
        s.lds = D * s.SLOT
        s.half = (D + 1) // 2
        assert s.half * s.SLOT <= 65536

    def acc(s, i, j):
        return s.ACC0 + (j * s.MI + i) * 4

    def setup_lanes(s, segoff_sgprs):
        a = s.a
        a("""
        v_and_b32 v18, 63, v0
        v_lshlrev_b32 v1, 4, v18
        """)
        a("s_lshl_b32 s25, s20, %d" % (10 + {1: 0, 2: 1, 4: 2}[s.MI]))
        a("v_add_u32 v1, s25, v1")
        a("""
        v_lshrrev_b32 v19, 3, v18
        v_and_b32 v20, 7, v18
        v_and_b32 v21, 6, v19
        v_xor_b32 v20, v20, v21
        v_lshlrev_b32 v20, 4, v20
        s_lshl_b32 s25, s20, 3
        v_add_u32 v19, s25, v19
        """)
        a("s_mov_b32 s26, %d" % s.pitch)
        a("v_mul_lo_u32 v19, v19, s26")
        a("v_add_u32 v19, v19, v20")
        if "H" in s.segs:
            a("""
            v_lshrrev_b32 v21, 2, v18
            v_and_b32 v22, 3, v18
            v_lshrrev_b32 v23, 3, v18
            v_and_b32 v23, 2, v23
            v_xor_b32 v22, v22, v23
            v_lshlrev_b32 v22, 4, v22
            v_add_u32 v21, s25, v21
            v_mul_lo_u32 v21, v21, s26
            v_add_u32 v21, v21, v22
            v_mov_b32 v22, 0x80000000
            v_cmp_gt_u32 vcc, 32, v18
            s_nop 1
            v_cndmask_b32 v21, v22, v21, vcc
            """)
        for si, t in enumerate(s.segs):
            a("s_add_u32 s25, s%d, %d" % (segoff_sgprs[si], 4096 - si * 1024))
            a("v_add_u32 v%d, s25, v%d" % (2 + si, 19 if t == "F" else 21))
        a("""
        v_lshrrev_b32 v19, 2, v18
        v_and_b32 v19, 7, v19
        v_lshrrev_b32 v20, 5, v18
        """)
        a("s_mov_b32 s26, %d" % s.REG)
        a("v_mul_lo_u32 v20, v20, s26")
        a("v_and_b32 v21, 3, v18")
        a("v_lshl_add_u32 v20, v21, 3, v20")
        a("v_lshrrev_b32 v22, 1, v19")
        a("v_lshl_add_u32 v23, v19, 7, v20")
        for e in range(4):
            a("v_xor_b32 v24, %d, v22" % e)
            a("v_lshl_add_u32 v%d, v24, 5, v23" % (6 + e))
        if "H" in s.segs:
            a("v_lshrrev_b32 v22, 2, v19")
            a("v_lshl_add_u32 v23, v19, 6, v20")
            for e in range(2):
                a("v_xor_b32 v24, %d, v22" % e)
                a("v_lshl_add_u32 v%d, v24, 5, v23" % (10 + e))
        for r in range(6 if "H" in s.segs else 4):
            a("v_add_u32 v%d, %d, v%d" % (12 + r, s.half * s.SLOT, 6 + r))
        a("s_mul_i32 s23, s20, %d" % s.REG)
        a("s_mov_b32 s21, 0")
        a("s_mov_b32 s22, 0")

    def issue_B(s, slot):
        o = ["s_add_u32 m0, s23, %d" % (slot * s.SLOT)]
        if s.opts.get("noB"):
            return []
        first = True
        for si in range(len(s.segs)):
            o.append("buffer_load_dwordx4 v%d, s[8:11], s22 offen offset:%d lds" % (2 + si, si * 1024))
        o.append("s_add_u32 s22, s22, %d" % (32 * s.pitch))
        return o

    def issue_A(s, buf):
        o = []
        if s.opts.get("noA"):
            return []
        for i in range(s.MI):
            o.append("buffer_load_dwordx4 %s, v1, s[4:7], s21 offen offset:%d" % (ar(s.A0 + (buf * s.MI + i) * 4, 4), i * 1024))
        o.append("s_add_u32 s21, s21, 16384")
        return o

    def reads(s, slot, st):
        o = []
        if s.opts.get("noR"):
            return []
        hi = slot >= s.half
        so = (slot - (s.half if hi else 0)) * s.SLOT
        for j, (si, e) in enumerate(s.frs):
            base = (6 + e if s.segs[si] == "F" else 10 + e) + (6 if hi else 0)
            for rd in range(2):
                o.append("ds_read_b64_tr_b16 %s, v%d offset:%d" % (ar(s.Bst[st] + j * 4 + rd * 2, 2), base, so + rd * 2 * s.REG + si * 1024))
        return o

    def mfmas(s, buf, st, first=None):
        o = []
        for j in range(s.NJ):
            for i in range(s.MI):
                x = ar(s.A0 + (buf * s.MI + i) * 4, 4)
                w = ar(s.Bst[st] + j * 4, 4)
                d = vr(s.acc(i, j), 4)
                c = d
                if first == "zero":
                    c = "0"
                elif first == "bias":
                    c = vr(s.acc(s.MI - 1, j), 4)
                p, q = (x, w) if j in s.vfrags else (w, x)
                o.append("v_mfma_f32_16x16x32_bf16 %s, %s, %s, %s" % (d, p, q, c))
        return o

    def vm(s):
        n = (s.D - 2) * ((0 if s.opts.get("noA") or s.opts.get("lnoA") else s.MI) + (0 if s.opts.get("noB") or s.opts.get("lnoB") else len(s.segs)))
        assert n <= 63
        return n

    def step(s, t, first=None):
        a, D = s.a, s.D
        mf = s.mfmas(t % D, t % 2, first)
        if s.opts.get("noM"):
            mf = mf[:1]
        pre = s.opts.get("pre", 2)
        if (s.opts.get("lnoA") or s.opts.get("lnoB")) and first is not None:
            a("s_waitcnt vmcnt(0)")
        a("s_waitcnt vmcnt(%d) lgkmcnt(0)" % s.vm())
        for m in mf[:pre]:
            a(m)
        if not s.opts.get("noBar"):
            a("s_barrier")
        rest = mf[pre:]
        vmem = ([] if s.opts.get("lnoB") else s.issue_B(t % D)) + ([] if s.opts.get("lnoA") else s.issue_A((t - 1) % D))
        rds = s.reads((t + 1) % D, (t + 1) % 2)
        if s.opts.get("lnoR") and first is None:
            rds = []
        last = 0
        n = len(rest)
        gaps = [[] for _ in range(max(n, 1))]
        tail = s.opts.get("tail", 6)
        usable = max(n - tail, 1)
        for k, r in enumerate(rds):
            gaps[min(k * usable // max(len(rds), 1), usable - 1)].append(r)
        vm = [x for x in vmem]
        nv = len([x for x in vm if x.startswith("buffer")])
        k = 0
        for x in vm:
            if x.startswith("buffer"):
                g = min(1 + (k * usable) // max(nv, 1), n - 1) if n else 0
                k += 1
                gaps[g].append(x)
                last = g
            elif "m0" in x:
                gaps[0].insert(0, x)
            else:
                gaps[min(last + 1, max(n - 1, 0))].append(x)
        for gi in range(max(n, 1)):
            for f in gaps[gi]:
                a(f)
            if gi < n:
                a(rest[gi])

    def prologue_issue(s):
        a, D = s.a, s.D
        for x in s.issue_B(0):
            a(x)
            if "m0" in x:
                a("s_nop 0")
        for t in range(-(D - 1), 0):
            for x in s.issue_B((t + D) % D):
                a(x)
                if "m0" in x:
                    a("s_nop 0")
            for x in s.issue_A((t - 1) % D):
                a(x)

    def prologue_first_reads(s, extra_newer=0):
        a = s.a
        n = (s.D - 1) * ((0 if s.opts.get("noA") else s.MI) + (0 if s.opts.get("noB") else len(s.segs)))
        a("s_waitcnt vmcnt(%d)" % min(63, n + extra_newer))
        a("s_barrier")
        for r in s.reads(0, 0):
            a(r)

    def loop(s, first):
        a, D, tag = s.a, s.D, s.tag
        U = D if D % 2 == 0 else 2 * D
        s.step(0, first)
        n = s.nsteps
        assert n % U == 0
        a("s_mov_b32 s24, %d" % (n // U))
        a("s_branch %s_p1" % tag)
        a.l.append(".p2align 6")
        a.lab(tag + "_p0")
        for t in range(U):
            if t == 1:
                a.lab(tag + "_p1")
            s.step(t)
        a("s_sub_u32 s24, s24, 1")
        a("s_cmp_lg_u32 s24, 0")
        a("s_cbranch_scc1 %s_p0" % tag)
        a("s_nop 7")
        a("s_nop 1")


def stamp(a, idx, opts):
    if not opts.get("stamp"):
        return
    a("s_memrealtime s[40:41]")
    a("s_memtime s[90:91]")
    a("s_waitcnt lgkmcnt(0)")
    a("v_mov_b32 v30, s40")
    a("v_mov_b32 v31, s90")
    a("v_mov_b32 v29, s2")
    a("v_lshlrev_b32 v29, 8, v29")
    a("s_lshl_b32 s42, s20, 6")
    a("s_add_u32 s42, s42, %d" % (L.STAMP + opts["stamp_base"] + idx * 8))
    a("buffer_store_dwordx2 v[30:31], v29, s[12:15], s42 offen")


def gen_g1(a, name, opts):
    kernel_begin(a, name)
    a("s_cmp_ge_u32 s2, 256")
    a("s_cbranch_scc1 %s_end" % name)
    a("s_load_dwordx2 s[28:29], s[0:1], %d" % KA["wqkv"])
    a("s_load_dwordx4 s[32:35], s[0:1], %d" % KA["w1"])
    a("s_load_dwordx2 s[30:31], s[0:1], %d" % KA["ws"])
    a("""
    v_lshrrev_b32 v1, 6, v0
    s_and_b32 s36, s2, 7
    v_readfirstlane_b32 s20, v1
    s_lshr_b32 s37, s2, 3
    s_and_b32 s38, s36, 1
    s_lshl_b32 s38, s38, 2
    s_lshr_b32 s39, s37, 1
    s_and_b32 s39, s39, 3
    s_add_u32 s38, s38, s39
    s_lshr_b32 s39, s36, 1
    s_lshl_b32 s39, s39, 2
    s_lshr_b32 s43, s37, 3
    s_add_u32 s39, s39, s43
    s_waitcnt lgkmcnt(0)
    """)
    srd(a, 12, 30, 31, str(256 << 20))
    a("s_lshl_b32 s43, s38, 19")
    a("s_add_u32 s44, s30, s43")
    a("s_addc_u32 s45, s31, 0")
    if L.XN:
        a("s_add_u32 s44, s44, %d" % L.XN)
        a("s_addc_u32 s45, s45, 0")
    srd(a, 4, 44, 45, str(512 << 10))
    stamp(a, 0, opts)
    a("s_and_b32 s43, s37, 1")
    a("s_cmp_eq_u32 s43, 0")
    a("s_cbranch_scc1 %s_qkv" % name)

    g = Gemm(a, name + "_w1", ["F", "F", "F", "H"], 7168, 32, D=opts.get("g1D", 8), opts=opts)
    a("s_sub_u32 s44, s32, 4096")
    a("s_subb_u32 s45, s33, 0")
    srd(a, 8, 44, 45, str(1024 * 7168 + 4096))
    srd(a, 16, 34, 35, str(7168))
    a("""
    s_mul_i32 s46, s39, 448
    s_and_b32 s47, s39, 1
    s_lshl_b32 s48, s47, 6
    s_add_u32 s48, s48, s46
    s_add_u32 s49, s48, 128
    s_add_u32 s50, s48, 256
    s_cmp_eq_u32 s47, 0
    s_cselect_b32 s51, 384, 0
    s_add_u32 s51, s51, s46
    v_lshrrev_b32 v25, 4, v0
    v_and_b32 v25, 3, v25
    v_lshlrev_b32 v25, 3, v25
    """)
    for j in range(14):
        a("buffer_load_dwordx2 %s, v25, s[16:19], s%d offen offset:%d" % (vr(g.acc(3, j) + 2, 2), 48 if j < 12 else 51, (j % 12) * 32 if j < 12 else (j - 12) * 32))
    g.setup_lanes([48, 49, 50, 51])
    g.prologue_issue()
    a("s_mov_b32 s27, 0xffff0000")
    a("s_waitcnt vmcnt(%d)" % min(63, (len(g.segs) if not opts.get("noB") else 0) + (g.D - 1) * ((0 if opts.get("noA") else 4) + (0 if opts.get("noB") else 4))))
    for j in range(14):
        b = g.acc(3, j)
        a("v_lshlrev_b32 v%d, 16, v%d" % (b, b + 2))
        a("v_and_b32 v%d, s27, v%d" % (b + 1, b + 2))
        a("v_lshlrev_b32 v%d, 16, v%d" % (b + 2, b + 3))
        a("v_and_b32 v%d, s27, v%d" % (b + 3, b + 3))
    g.prologue_first_reads()
    stamp(a, 1, opts)
    g.loop("bias")
    stamp(a, 2, opts)
    a("""
    s_mul_i32 s46, s38, 112
    s_mul_i32 s52, s39, 7
    s_add_u32 s46, s46, s52
    s_add_u32 s52, s46, s47
    s_cmp_eq_u32 s47, 0
    s_cselect_b32 s53, 6, 0
    s_add_u32 s53, s53, s46
    s_lshl_b32 s52, s52, 14
    s_lshl_b32 s53, s53, 14
    """)
    a("s_add_u32 s52, s52, %d" % L.H)
    a("s_add_u32 s53, s53, %d" % L.H)
    sf = opts.get("stflag", "")
    for u in range(7):
        for i in range(4):
            p, q = g.acc(i, 2 * u), g.acc(i, 2 * u + 1)
            for r in range(4):
                a("v_mul_f32 v%d, v%d, abs(v%d)" % (p + r, p + r, p + r))
            for r in range(4):
                a("v_mul_f32 v%d, v%d, abs(v%d)" % (q + r, q + r, q + r))
            a("v_cvt_pk_bf16_f32 v%d, v%d, v%d" % (p, p, p + 1))
            a("v_cvt_pk_bf16_f32 v%d, v%d, v%d" % (p + 1, p + 2, p + 3))
            a("v_cvt_pk_bf16_f32 v%d, v%d, v%d" % (p + 2, q, q + 1))
            a("v_cvt_pk_bf16_f32 v%d, v%d, v%d" % (p + 3, q + 2, q + 3))
            for r in range(4):
                a("v_pk_max_i16 v%d, v%d, 0" % (p + r, p + r))
            a("buffer_store_dwordx4 %s, v1, s[12:15], s%d offen offset:%d %s" % (vr(p, 4), 52 if u < 6 else 53, i * 1024, sf))
        if u < 5:
            a("s_add_u32 s52, s52, 16384")
    if opts.get("stamp"):
        a("s_waitcnt vmcnt(0)")
    stamp(a, 3, opts)
    a("s_endpgm")

    a.lab(name + "_qkv")
    g = Gemm(a, name + "_qkv", ["F", "F", "F"], 6144, 32, D=opts.get("g1D", 8), vfrags=range(8, 12), opts=opts)
    a("s_sub_u32 s44, s28, 4096")
    a("s_subb_u32 s45, s29, 0")
    srd(a, 8, 44, 45, str(1024 * 6144 + 4096))
    a("""
    s_lshl_b32 s48, s39, 7
    s_add_u32 s49, s48, 2048
    s_add_u32 s50, s48, 4096
    """)
    g.setup_lanes([48, 49, 50])
    g.prologue_issue()
    g.prologue_first_reads()
    stamp(a, 1, opts)
    g.loop("zero")
    stamp(a, 2, opts)
    a("""
    s_lshl_b32 s46, s39, 18
    s_lshl_b32 s47, s38, 14
    s_add_u32 s46, s46, s47
    """)
    for part, base in ((0, L.Q), (1, L.K), (2, L.V)):
        for c in range(2):
            a("s_add_u32 s52, s46, %d" % (base + c * 131072))
            for z in range(4):
                if part < 2:
                    p, q = g.acc(z, part * 4 + 2 * c), g.acc(z, part * 4 + 2 * c + 1)
                else:
                    ip, dh = z // 2, z % 2
                    p, q = g.acc(2 * ip, 8 + 2 * c + dh), g.acc(2 * ip + 1, 8 + 2 * c + dh)
                a("v_cvt_pk_bf16_f32 v%d, v%d, v%d" % (p, p, p + 1))
                a("v_cvt_pk_bf16_f32 v%d, v%d, v%d" % (p + 1, p + 2, p + 3))
                a("v_cvt_pk_bf16_f32 v%d, v%d, v%d" % (p + 2, q, q + 1))
                a("v_cvt_pk_bf16_f32 v%d, v%d, v%d" % (p + 3, q + 2, q + 3))
                a("buffer_store_dwordx4 %s, v1, s[12:15], s52 offen offset:%d %s" % (vr(p, 4), z * 1024, sf))
    if opts.get("stamp"):
        a("s_waitcnt vmcnt(0)")
    stamp(a, 3, opts)
    a.lab(name + "_end")
    a("s_endpgm")
    return kd(name, 512, 256, 96)


def decode_wg(a):
    a("""
    v_lshrrev_b32 v1, 6, v0
    s_and_b32 s36, s2, 7
    v_readfirstlane_b32 s20, v1
    s_lshr_b32 s37, s2, 3
    s_and_b32 s38, s36, 1
    s_lshl_b32 s38, s38, 2
    s_lshr_b32 s39, s37, 1
    s_and_b32 s39, s39, 3
    s_add_u32 s38, s38, s39
    s_lshr_b32 s39, s36, 1
    s_lshl_b32 s39, s39, 2
    s_lshr_b32 s43, s37, 3
    s_add_u32 s39, s39, s43
    """)


def merge(valu, mf, every):
    out = []
    k = 0
    for n, v in enumerate(valu):
        out.append(v)
        if (n + 1) % every == 0 and k < len(mf):
            out.append(mf[k]); k += 1
    out += mf[k:]
    return out


def att_body(a, opts, ldflag="", stflag=""):
    KA0, VA0, QA0 = 0, 80, 160
    SB = [32, 104]
    CG, CU, CD, ONES, OA = 176, 192, 196, 200, 204
    T = 228
    a("s_lshl_b32 s47, s46, 17")
    for d, base in ((4, L.Q), (8, L.K), (16, L.V)):
        a("s_add_u32 s44, s47, %d" % base)
        a("s_add_u32 s44, s30, s44")
        a("s_addc_u32 s45, s31, 0")
        srd(a, d, 44, 45, str(131072))
    a("""
    v_and_b32 v18, 63, v0
    v_lshlrev_b32 v1, 4, v18
    s_lshl_b32 s48, s38, 14
    s_lshl_b32 s49, s20, 12
    s_add_u32 s48, s48, s49
    s_sub_u32 s50, s48, 16384
    s_sub_u32 s51, s48, 12288
    s_sub_u32 s52, s48, 8192
    s_sub_u32 s53, s48, 4096
    """)
    so = [50, 51, 52, 53, 48]
    for z in range(4):
        a("buffer_load_dwordx4 %s, v1, s[4:7], s48 offen offset:%d %s" % (ar(QA0 + 4 * z, 4), z * 1024, ldflag))
    for kt in range(20):
        a("buffer_load_dwordx4 %s, v1, s[8:11], s%d offen offset:%d %s" % (ar(KA0 + 4 * kt, 4), so[kt // 4], (kt % 4) * 1024, ldflag))
    for kt in range(20):
        a("buffer_load_dwordx4 %s, v1, s[16:19], s%d offen offset:%d %s" % (ar(VA0 + 4 * kt, 4), so[kt // 4], (kt % 4) * 1024, ldflag))
    a("s_mov_b32 s54, 0xf149f2ca")
    for g in range(4):
        a("s_cmp_lt_i32 s%d, 0" % so[g])
        a("s_cselect_b32 s55, s54, 0")
        for r in range(4):
            a("v_mov_b32 v%d, s55" % (CG + 4 * g + r))
    a("""
    v_and_b32 v19, 15, v18
    v_lshrrev_b32 v20, 4, v18
    v_lshlrev_b32 v20, 2, v20
    v_mov_b32 v21, s54
    """)
    for r in range(4):
        a("v_add_u32 v22, %d, v20" % r)
        a("v_cmp_gt_u32 vcc, v22, v19")
        a("v_cndmask_b32 v%d, v21, v%d, vcc" % (CU + r, CG + r))
        a("v_cndmask_b32 v%d, 0, v21, vcc" % (CD + r))
        a("v_mov_b32 v%d, 0x3f803f80" % (ONES + r))
    import math
    import struct
    c = (32 ** -0.5) * math.log2(math.e)
    a("s_mov_b32 s56, 0x%08x" % struct.unpack("<I", struct.pack("<f", c))[0])
    a("""
    s_lshl_b32 s57, s38, 19
    s_lshl_b32 s58, s46, 14
    s_add_u32 s57, s57, s58
    s_add_u32 s57, s57, s49
    """)
    a("s_add_u32 s57, s57, %d" % L.O)

    def sreg(z, kt):
        base = (z // 2) * 2
        return SB[z % 2] + (kt - base) * 4

    def s_mfmas(z):
        o = []
        for kt in range(z, z + 17):
            if kt == z:
                cc = vr(CU, 4)
            elif kt == z + 16:
                cc = vr(CD, 4)
            elif kt < 16:
                cc = vr(CG + 4 * (kt // 4), 4)
            else:
                cc = "0"
            o.append("v_mfma_f32_16x16x32_bf16 %s, %s, %s, %s" % (vr(sreg(z, kt), 4), ar(KA0 + 4 * kt, 4), ar(QA0 + 4 * z, 4), cc))
        return o

    def maxpart(z):
        rs = [sreg(z, kt) + r for kt in range(z, z + 17) for r in range(4)]
        o = []
        ch = [T, T + 1, T + 2, T + 3]
        for k in range(4):
            o.append("v_max3_f32 v%d, v%d, v%d, v%d" % (ch[k], rs[3 * k], rs[3 * k + 1], rs[3 * k + 2]))
        rest = rs[12:]
        k = 0
        while rest:
            o.append("v_max3_f32 v%d, v%d, v%d, v%d" % (ch[k % 4], ch[k % 4], rest[0], rest[1]))
            rest = rest[2:]
            k += 1
        o.append("v_max3_f32 v%d, v%d, v%d, v%d" % (T, T, T + 1, T + 2))
        o.append("v_max_f32 v%d, v%d, v%d" % (T, T, T + 3))
        o.append("v_mov_b32 v%d, v%d" % (T + 1, T))
        o.append("v_permlane32_swap_b32 v%d, v%d" % (T, T + 1))
        o.append("v_max_f32 v%d, v%d, v%d" % (T, T, T + 1))
        o.append("v_mov_b32 v%d, v%d" % (T + 1, T))
        o.append("v_permlane16_swap_b32 v%d, v%d" % (T, T + 1))
        o.append("v_max_f32 v%d, v%d, v%d" % (T, T, T + 1))
        o.append("v_mul_f32 v%d, s56, v%d" % (T + 4, T))
        return o

    def exp_pair(z, vp):
        o = []
        p = sreg(z, 2 * vp)
        for h in range(2):
            kt = 2 * vp + h
            if z <= kt <= z + 16:
                b = sreg(z, kt)
                for r in range(4):
                    o.append("v_fma_f32 v%d, v%d, s56, -v%d" % (b + r, b + r, T + 4))
                for r in range(4):
                    o.append("v_exp_f32 v%d, v%d" % (b + r, b + r))
        for h in range(2):
            kt = 2 * vp + h
            b = sreg(z, kt)
            if z <= kt <= z + 16:
                o.append("v_cvt_pk_bf16_f32 v%d, v%d, v%d" % (p + 2 * h, b, b + 1))
                o.append("v_cvt_pk_bf16_f32 v%d, v%d, v%d" % (p + 2 * h + 1, b + 2, b + 3))
            else:
                o.append("v_mov_b32 v%d, 0" % (p + 2 * h))
                o.append("v_mov_b32 v%d, 0" % (p + 2 * h + 1))
        oa = OA + 12 * (z % 2)
        first = vp == z // 2
        m = []
        for d in range(3):
            src = ar(VA0 + (2 * vp + d) * 4, 4) if d < 2 else vr(ONES, 4)
            m.append("v_mfma_f32_16x16x32_bf16 %s, %s, %s, %s" % (vr(oa + 4 * d, 4), src, vr(p, 4), "0" if first else vr(oa + 4 * d, 4)))
        return o, m

    def norm(z):
        oa = OA + 12 * (z % 2)
        o = ["v_rcp_f32 v%d, v%d" % (T + 5, oa + 8), "s_nop 0"]
        for r in range(8):
            o.append("v_mul_f32 v%d, v%d, v%d" % (oa + r, oa + r, T + 5))
        for r in range(4):
            o.append("v_cvt_pk_bf16_f32 v%d, v%d, v%d" % (oa + r, oa + 2 * r, oa + 2 * r + 1))
        o.append("buffer_store_dwordx4 %s, v1, s[12:15], s57 offen offset:%d %s" % (vr(oa, 4), z * 1024, stflag))
        return o

    sm = s_mfmas(0)
    for n, m in enumerate(sm):
        if n % 4 == 0:
            a("s_waitcnt vmcnt(%d)" % (40 - min(20, (n // 4 + 1) * 4)))
        a(m)
    a("s_waitcnt vmcnt(20)")
    pend = []
    for z in range(4):
        nxt = s_mfmas(z + 1) if z < 3 else []
        mp = maxpart(z)
        for x in merge(mp, pend + nxt[:max(0, 17 - len(pend))], 2):
            a(x)
        nxt = nxt[max(0, 17 - len(pend)):]
        pend = []
        if z == 0:
            a("s_waitcnt vmcnt(0)")
        for n, vp in enumerate(range(z // 2, z // 2 + 9)):
            o, m = exp_pair(z, vp)
            if n == 1 and z > 0:
                o = o + norm(z - 1)
            extra = nxt[:2]; nxt = nxt[2:]
            for x in merge(o, pend + extra, 3):
                a(x)
            pend = m
        assert not nxt
    for x in pend:
        a(x)
    for x in norm(3):
        a(x)


def gen_att(a, name, opts):
    kernel_begin(a, name)
    a("s_cmp_ge_u32 s2, 256")
    a("s_cbranch_scc1 %s_end" % name)
    a("s_load_dwordx2 s[30:31], s[0:1], %d" % KA["ws"])
    decode_wg(a)
    a("""
    s_and_b32 s46, s37, 1
    s_lshl_b32 s43, s39, 1
    s_add_u32 s46, s46, s43
    s_waitcnt lgkmcnt(0)
    """)
    srd(a, 12, 30, 31, str(256 << 20))
    stamp(a, 0, opts)
    stamp(a, 1, opts)
    att_body(a, opts)
    stamp(a, 2, opts)
    if opts.get("stamp"):
        a("s_waitcnt vmcnt(0)")
    stamp(a, 3, opts)
    a.lab(name + "_end")
    a("s_endpgm")
    return kd(name, 512, 256, 96)


def gen_g2(a, name, opts):
    D = opts.get("g2d", 6)
    MI, NJ = 8, 4
    ACC0 = 64
    Bst = [0, 16]
    A0 = 32
    XR, BR = 32, 48
    def acc(i, j): return ACC0 + (i * NJ + j) * 4
    kernel_begin(a, name)
    a("s_cmp_ge_u32 s2, 256")
    a("s_cbranch_scc1 %s_end" % name)
    a("s_load_dwordx2 s[28:29], s[0:1], %d" % KA["x"])
    a("s_load_dwordx2 s[26:27], s[0:1], %d" % KA["wo"])
    a("s_load_dwordx4 s[32:35], s[0:1], %d" % KA["w2"])
    a("s_load_dwordx2 s[56:57], s[0:1], %d" % KA["out"])
    a("s_load_dwordx2 s[30:31], s[0:1], %d" % KA["ws"])
    a("""
    v_lshrrev_b32 v1, 6, v0
    s_and_b32 s36, s2, 7
    v_readfirstlane_b32 s20, v1
    s_lshr_b32 s37, s2, 3
    s_and_b32 s38, s36, 3
    s_lshl_b32 s38, s38, 2
    s_and_b32 s39, s37, 3
    s_add_u32 s38, s38, s39
    s_lshr_b32 s39, s36, 2
    s_lshl_b32 s39, s39, 3
    s_lshr_b32 s43, s37, 2
    s_add_u32 s39, s39, s43
    """)
    a("""
    s_mul_i32 s46, s20, 37
    s_min_u32 s47, s20, 1
    s_add_u32 s46, s46, s47
    s_cmp_eq_u32 s20, 0
    s_cselect_b32 s24, 38, 37
    s_cmp_eq_u32 s20, 3
    s_cselect_b32 s24, 32, s24
    s_cselect_b32 s46, 0, s46
    s_cselect_b32 s47, 32, 112
    """)
    a("s_cselect_b32 s48, %d, %d" % (L.O, L.H) if False else "s_mov_b32 s48, %d" % L.H)
    a("s_cselect_b32 s48, %d, s48" % L.O)
    a("s_waitcnt lgkmcnt(0)")
    a("s_cselect_b32 s32, s26, s32")
    a("s_cselect_b32 s33, s27, s33")
    a("""
    s_lshr_b32 s49, s38, 1
    s_mul_i32 s49, s49, s47
    s_add_u32 s49, s49, s46
    s_lshl_b32 s49, s49, 14
    s_add_u32 s48, s48, s49
    s_and_b32 s49, s38, 1
    s_lshl_b32 s49, s49, 13
    s_add_u32 s48, s48, s49
    s_add_u32 s44, s30, s48
    s_addc_u32 s45, s31, 0
    s_lshl_b32 s50, s24, 14
    s_sub_u32 s50, s50, s49
    """)
    srd(a, 4, 44, 45, "s50")
    a("""
    s_lshl_b32 s49, s46, 16
    s_lshl_b32 s51, s39, 7
    s_add_u32 s49, s49, s51
    s_add_u32 s44, s32, s49
    s_addc_u32 s45, s33, 0
    s_lshl_b32 s50, s24, 16
    s_sub_u32 s50, s50, s51
    """)
    srd(a, 8, 44, 45, "s50")
    srd(a, 12, 30, 31, str(256 << 20))
    srd(a, 16, 28, 29, str(4 << 20))
    srd(a, 60, 34, 35, str(2048))
    srd(a, 64, 56, 57, str(4 << 20))
    stamp(a, 0, opts)
    a("""
    v_and_b32 v18, 63, v0
    v_lshlrev_b32 v19, 4, v18
    """)
    for p in range(4):
        a("s_add_u32 s25, s20, %d" % p)
        a("s_and_b32 s25, s25, 3")
        a("s_lshl_b32 s25, s25, 11")
        a("v_add_u32 v%d, s25, v19" % (2 + p))
    a("""
    v_lshrrev_b32 v20, 3, v18
    v_and_b32 v21, 7, v18
    v_and_b32 v22, 6, v20
    v_xor_b32 v21, v21, v22
    v_lshlrev_b32 v21, 4, v21
    v_lshl_add_u32 v6, v20, 11, v21
    """)
    for r in range(1, 4):
        a("v_add_u32 v%d, %d, v6" % (6 + r, r * (8 * 2048 - 1024)))
    a("s_mul_i32 s23, s20, %d" % (D * 4096))
    a("""
    v_lshrrev_b32 v20, 2, v18
    v_and_b32 v20, 7, v20
    v_lshrrev_b32 v21, 5, v18
    v_lshlrev_b32 v21, 10, v21
    v_and_b32 v22, 3, v18
    v_lshl_add_u32 v21, v22, 3, v21
    v_lshl_add_u32 v21, v20, 7, v21
    v_add_u32 v21, s23, v21
    v_lshrrev_b32 v22, 1, v20
    """)
    for e in range(4):
        a("v_xor_b32 v23, %d, v22" % e)
        a("v_lshl_add_u32 v%d, v23, 5, v21" % (10 + e))
    a("""
    v_and_b32 v20, 15, v18
    v_lshrrev_b32 v21, 4, v18
    v_lshlrev_b32 v14, 11, v20
    v_lshlrev_b32 v15, 3, v21
    v_add_u32 v14, v14, v15
    s_lshl_b32 s52, s38, 18
    s_lshl_b32 s53, s20, 16
    s_add_u32 s52, s52, s53
    s_add_u32 s52, s52, s51
    s_add_u32 s53, s52, 32768
    """)
    s21_init = ["s_mov_b32 s21, 0", "s_mov_b32 s22, 0"]
    for x in s21_init:
        a(x)

    def issue_B(slot):
        o = ["s_add_u32 m0, s23, %d" % (slot * 4096)]
        for r in range(4):
            o.append("buffer_load_dwordx4 v%d, s[8:11], s22 offen offset:%d lds" % (6 + r, r * 1024))
        o.append("s_add_u32 s22, s22, 65536")
        if opts.get("g2l2"):
            o.append("s_and_b32 s22, s22, 0x1ffff")
        if opts.get("g2noB"):
            o = []
        return o

    def issue_A(buf):
        o = []
        for i in range(MI):
            o.append("buffer_load_dwordx4 %s, v%d, s[4:7], s21 offen offset:%d" % (ar(A0 + (buf * MI + i) * 4, 4), 2 + i // 2, (i % 2) * 1024))
        o.append("s_add_u32 s21, s21, 16384")
        if opts.get("g2l2"):
            o.append("s_and_b32 s21, s21, 0xffff")
        if opts.get("g2noA"):
            o = []
        return o

    def reads(slot, st):
        o = []
        for j in range(NJ):
            for rd in range(2):
                o.append("ds_read_b64_tr_b16 %s, v%d offset:%d" % (ar(Bst[st] + j * 4 + rd * 2, 2), 10 + j, slot * 4096 + rd * 2048))
        return o

    def mfmas(buf, st, first):
        o = []
        for i in range(MI):
            for j in range(NJ):
                d = vr(acc(i, j), 4)
                o.append("v_mfma_f32_16x16x32_bf16 %s, %s, %s, %s" % (d, ar(Bst[st] + j * 4, 4), ar(A0 + (buf * MI + i) * 4, 4), "0" if first else d))
        if opts.get("g2noM"):
            o = o[:1]
        return o

    def step(t, first=False):
        a("s_waitcnt vmcnt(%d) lgkmcnt(0)" % ((D - 2) * (12 - (8 if opts.get("g2noA") else 0) - (4 if opts.get("g2noB") else 0))))
        mf = mfmas(t % D, t % 2, first)
        vm = issue_B(t % D) + issue_A((t - 1) % D)
        rds = reads((t + 1) % D, (t + 1) % 2)
        fill = []
        gaps = [[] for _ in mf]
        n = len(mf)
        for k, r in enumerate(rds):
            gaps[min(2 * k + 1, n - 1)].append(r)
        k = 0
        for x in vm:
            if x.startswith("buffer"):
                g = min(2 * k + 2, n - 1); k += 1
                gaps[g].append(x)
            elif "m0" in x:
                gaps[0].append(x)
            else:
                gaps[min(g + 1, n - 1)].append(x)
        for gi in range(n):
            a(mf[gi])
            for f in gaps[gi]:
                a(f)

    for x in issue_B(0):
        a(x)
    for t in range(-(D - 1), 0):
        for x in issue_B((t + D) % D):
            a(x)
        for x in issue_A((t - 1) % D):
            a(x)
    a("s_waitcnt vmcnt(%d)" % min(63, (D - 1) * 12))
    for r in reads(0, 0):
        a(r)
    stamp(a, 1, opts)
    U = D if D % 2 == 0 else 2 * D
    step(0, True)
    a("s_sub_u32 s24, s24, 1")
    a("s_branch %s_p1" % name)
    a.l.append(".p2align 6")
    a.lab(name + "_p0")
    for t in range(U):
        if t == 1:
            a.lab(name + "_p1")
        step(t)
        a("s_sub_u32 s24, s24, 1")
        a("s_cmp_eq_u32 s24, 0")
        if t < U - 1:
            a("s_cbranch_scc1 %s_done" % name)
        else:
            a("s_cbranch_scc0 %s_p0" % name)
    a.lab(name + "_done")
    stamp(a, 2, opts)
    for i in range(2):
        for j in range(4):
            a("buffer_load_dwordx2 %s, v14, s[16:19], s%d offen offset:%d" % (vr(XR + (i * 4 + j) * 2, 2), 52 + i, j * 32))
    for j in range(4):
        a("buffer_load_dwordx2 %s, v15, s[60:63], s51 offen offset:%d" % (vr(BR + j * 2, 2), j * 32))
    a("s_waitcnt vmcnt(12) lgkmcnt(0)")
    a("s_barrier")
    for p in range(1, 4):
        a("s_add_u32 s25, s20, %d" % p)
        a("s_and_b32 s25, s25, 3")
        a("s_cmp_gt_u32 s20, s25")
        a("s_cselect_b32 s26, 1, 0")
        a("s_sub_u32 s26, s20, s26")
        a("s_mul_i32 s25, s25, 3")
        a("s_add_u32 s25, s25, s26")
        a("s_lshl_b32 s25, s25, 13")
        a("v_add_u32 v%d, s25, v19" % (20 + p))
        for q in range(8):
            a("ds_write_b128 v%d, %s offset:%d" % (20 + p, vr(ACC0 + (p * 8 + q) * 4, 4), q * 1024))
    a("s_mul_i32 s25, s20, 24576")
    a("v_add_u32 v20, s25, v19")
    a("s_waitcnt lgkmcnt(0)")
    a("s_barrier")
    R0 = ACC0 + 32
    for sl in range(3):
        for q in range(8):
            a("ds_read_b128 %s, v20 offset:%d" % (vr(R0 + (sl * 8 + q) * 4, 4), sl * 8192 + q * 1024))
    a("""
    v_and_b32 v21, 15, v18
    v_lshlrev_b32 v21, 11, v21
    v_lshrrev_b32 v22, 4, v18
    v_and_b32 v23, 1, v22
    v_lshl_add_u32 v21, v23, 5, v21
    v_lshrrev_b32 v23, 1, v22
    v_lshl_add_u32 v21, v23, 4, v21
    s_mov_b32 s27, 0xffff0000
    s_mov_b32 s58, 0xbfb8aa3b
    s_waitcnt vmcnt(0) lgkmcnt(0)
    s_cmp_eq_u32 s20, 3
    """)
    a("s_cbranch_scc0 %s_fin" % name)
    for r in range(32):
        a("v_swap_b32 v%d, v%d" % (ACC0 + r, R0 + 64 + r))
    a.lab(name + "_fin")
    BF = 160 + 64
    for j in range(4):
        a("v_lshlrev_b32 v%d, 16, v%d" % (BF + 4 * j, BR + 2 * j))
        a("v_and_b32 v%d, s27, v%d" % (BF + 4 * j + 1, BR + 2 * j))
        a("v_lshlrev_b32 v%d, 16, v%d" % (BF + 4 * j + 2, BR + 2 * j + 1))
        a("v_and_b32 v%d, s27, v%d" % (BF + 4 * j + 3, BR + 2 * j + 1))
    for i in range(2):
        for jp in range(2):
            for j in (2 * jp, 2 * jp + 1):
                q = i * 4 + j
                f = ACC0 + q * 4
                for r in range(4):
                    a("v_add_f32 v%d, v%d, v%d" % (f + r, f + r, BF + 4 * j + r))
                for r in range(4):
                    a("v_add_f32 v%d, v%d, v%d" % (R0 + q * 4 + r, R0 + q * 4 + r, R0 + 32 + q * 4 + r))
                for r in range(4):
                    a("v_add_f32 v%d, v%d, v%d" % (f + r, f + r, R0 + q * 4 + r))
                t = R0 + q * 4
                for r in range(4):
                    a("v_mul_f32 v%d, s58, v%d" % (t + r, f + r))
                for r in range(4):
                    a("v_exp_f32 v%d, v%d" % (t + r, t + r))
                for r in range(4):
                    a("v_mul_f32 v%d, v%d, v%d" % (f + r, f + r, R0 + 64 + q * 4 + r))
                for r in range(4):
                    a("v_add_f32 v%d, 1.0, v%d" % (t + r, t + r))
                for r in range(4):
                    a("v_rcp_f32 v%d, v%d" % (t + r, t + r))
                x = XR + q * 2
                u = R0 + 32 + q * 4
                a("v_lshlrev_b32 v%d, 16, v%d" % (u, x))
                a("v_and_b32 v%d, s27, v%d" % (u + 1, x))
                a("v_lshlrev_b32 v%d, 16, v%d" % (u + 2, x + 1))
                a("v_and_b32 v%d, s27, v%d" % (u + 3, x + 1))
                for r in range(4):
                    a("v_fma_f32 v%d, v%d, v%d, v%d" % (f + r, f + r, t + r, u + r))
            p, q2 = ACC0 + (i * 4 + 2 * jp) * 4, ACC0 + (i * 4 + 2 * jp + 1) * 4
            a("v_cvt_pk_bf16_f32 v%d, v%d, v%d" % (p, p, p + 1))
            a("v_cvt_pk_bf16_f32 v%d, v%d, v%d" % (p + 1, p + 2, p + 3))
            a("v_cvt_pk_bf16_f32 v%d, v%d, v%d" % (p + 2, q2, q2 + 1))
            a("v_cvt_pk_bf16_f32 v%d, v%d, v%d" % (p + 3, q2 + 2, q2 + 3))
            a("v_permlane16_swap_b32 v%d, v%d" % (p, p + 2))
            a("v_permlane16_swap_b32 v%d, v%d" % (p + 1, p + 3))
            a("buffer_store_dwordx4 %s, v21, s[64:67], s%d offen offset:%d" % (vr(p, 4), 52 + i, jp * 64))
    if opts.get("stamp"):
        a("s_waitcnt vmcnt(0)")
    stamp(a, 3, opts)
    a.lab(name + "_end")
    a("s_endpgm")
    return kd(name, 512, 256, 96)


class VmQ:
    def __init__(s):
        s.q = []

    def issue(s, tag):
        s.q.append(tag)

    def need(s, tag):
        idx = [k for k, t in enumerate(s.q) if t == tag]
        if not idx:
            return None
        n = len(s.q) - 1 - idx[-1]
        s.q = s.q[idx[-1] + 1:]
        return n


def place(mf, fillers, lead=0, tail=0):
    n = len(mf)
    gaps = [[] for _ in range(n)]
    us = max(n - tail - lead, 1)
    for k, f in enumerate(fillers):
        g = lead + (k * us) // len(fillers)
        gaps[min(g, n - 1)] += list(f) if isinstance(f, tuple) else [f]
    out = []
    for g in range(n):
        out.append(mf[g])
        out += gaps[g]
    return out


def riffle(x, y):
    out = []
    i = j = 0
    while i < len(x) or j < len(y):
        if j >= len(y) or (i < len(x) and i * len(y) <= j * len(x)):
            out.append(x[i]); i += 1
        else:
            out.append(y[j]); j += 1
    return out


def spin(a, tag, vflag, voff, soff, mask_sgpr, first_loaded=True):
    a("s_mov_b32 s70, 0")
    if not first_loaded:
        a("s_branch %s_ld" % tag)
    a.lab(tag + "_chk")
    a("v_cmp_ne_u32 vcc, 0, v%d" % vflag)
    a("s_nop 1")
    a("s_andn2_b64 s[72:73], %s, vcc" % mask_sgpr)
    a("s_cbranch_scc0 %s_ok" % tag)
    a("s_add_u32 s70, s70, 1")
    a("s_cmp_gt_u32 s70, 0x40000")
    a("s_cbranch_scc1 %s_ok" % tag)
    a("s_sleep 2")
    a.lab(tag + "_ld")
    a("buffer_load_dword v%d, v%d, s[12:15], %s offen sc1" % (vflag, voff, soff))
    a("s_waitcnt vmcnt(0)")
    a("s_branch %s_chk" % tag)
    a.lab(tag + "_ok")


def g2_setup(a, opts):
    a("s_load_dwordx2 s[28:29], s[0:1], %d" % KA["x"])
    a("s_load_dwordx2 s[26:27], s[0:1], %d" % KA["wo"])
    a("s_load_dwordx4 s[32:35], s[0:1], %d" % KA["w2"])
    a("s_load_dwordx2 s[56:57], s[0:1], %d" % KA["out"])
    a("""
    s_and_b32 s36, s2, 7
    s_lshr_b32 s37, s2, 3
    s_and_b32 s46, s36, 1
    s_lshr_b32 s38, s36, 1
    s_lshl_b32 s38, s38, 2
    s_and_b32 s39, s37, 3
    s_add_u32 s38, s38, s39
    s_lshr_b32 s39, s37, 2
    s_lshl_b32 s47, s39, 8
    s_lshl_b32 s48, s46, 7
    s_add_u32 s51, s47, s48
    s_xor_b32 s50, s51, 128
    """)
    a("""
    s_lshr_b32 s47, s38, 1
    s_and_b32 s48, s38, 1
    s_lshl_b32 s48, s48, 13
    s_lshl_b32 s25, s20, 11
    s_add_u32 s48, s48, s25
    s_lshl_b32 s49, s47, 19
    s_add_u32 s49, s49, s48
    s_mul_i32 s21, s47, 112
    s_mul_i32 s25, s46, 56
    s_add_u32 s21, s21, s25
    s_lshl_b32 s21, s21, 14
    s_add_u32 s21, s21, s48
    s_mul_i32 s22, s46, 3670016
    s_mov_b32 s59, 0
    s_lshl_b32 s23, s20, 12
    """)
    a("s_add_u32 s21, s21, %d" % L.H)
    a("s_add_u32 s49, s49, %d" % L.O)
    a("""
    v_and_b32 v18, 63, v0
    v_lshlrev_b32 v1, 4, v18
    v_add_u32 v14, 16384, v1
    v_add_u32 v15, 32768, v1
    v_add_u32 v16, 49152, v1
    v_lshrrev_b32 v20, 3, v18
    v_and_b32 v21, 7, v18
    v_and_b32 v22, 6, v20
    v_xor_b32 v21, v21, v22
    v_lshlrev_b32 v21, 4, v21
    s_lshl_b32 s25, s20, 3
    v_add_u32 v20, s25, v20
    v_lshl_add_u32 v21, v20, 11, v21
    """)
    for pi in range(4):
        a("s_add_u32 s25, s%d, %d" % (51 if pi % 2 == 0 else 50, 4096 - pi * 1024 + (pi // 2) * 65536))
        a("v_add_u32 v%d, s25, v21" % (2 + pi))
        a("s_add_u32 s25, s51, %d" % (4096 - pi * 1024 + pi * 65536))
        a("v_add_u32 v%d, s25, v21" % (6 + pi))
    a("""
    v_lshrrev_b32 v20, 2, v18
    v_and_b32 v20, 7, v20
    v_lshrrev_b32 v21, 5, v18
    v_lshlrev_b32 v21, 12, v21
    v_and_b32 v22, 3, v18
    v_lshl_add_u32 v21, v22, 3, v21
    v_lshl_add_u32 v21, v20, 7, v21
    v_lshrrev_b32 v22, 1, v20
    """)
    for e in range(4):
        a("v_xor_b32 v23, %d, v22" % e)
        a("v_lshl_add_u32 v%d, v23, 5, v21" % (10 + e))
    a("""
    v_and_b32 v20, 15, v18
    v_lshrrev_b32 v21, 4, v18
    v_lshlrev_b32 v19, 3, v21
    v_lshl_add_u32 v17, v20, 11, v19
    v_lshlrev_b32 v24, 11, v20
    v_and_b32 v23, 1, v21
    v_lshl_add_u32 v24, v23, 5, v24
    v_lshrrev_b32 v23, 1, v21
    v_lshl_add_u32 v24, v23, 4, v24
    v_lshlrev_b32 v25, 2, v18
    s_lshl_b32 s52, s38, 18
    s_lshl_b32 s53, s20, 16
    s_add_u32 s52, s52, s53
    s_add_u32 s52, s52, s51
    s_add_u32 s53, s52, 32768
    """)
    a("""
    s_lshl_b32 s47, s38, 3
    s_add_u32 s47, s47, s39
    s_lshl_b32 s47, s47, 1
    s_add_u32 s47, s47, s46
    s_lshl_b32 s47, s47, 2
    s_add_u32 s47, s47, s20
    s_lshl_b32 s80, s47, 13
    s_xor_b32 s81, s80, 32768
    s_lshl_b32 s82, s47, 2
    s_xor_b32 s83, s82, 16
    """)
    a("s_add_u32 s80, s80, %d" % L.F)
    a("s_add_u32 s81, s81, %d" % L.F)
    a("s_add_u32 s82, s82, %d" % L.PF)
    a("s_add_u32 s83, s83, %d" % L.PF)
    a("s_add_u32 s84, s80, 4096")
    a("s_add_u32 s85, s81, 4096")
    a("""
    s_lshl_b32 s47, s38, 1
    s_lshr_b32 s25, s20, 1
    s_add_u32 s47, s47, s25
    s_lshl_b32 s86, s47, 6
    s_lshl_b32 s25, s46, 5
    s_add_u32 s86, s86, s25
    s_lshl_b32 s87, s47, 7
    """)
    a("s_add_u32 s86, s86, %d" % L.HF)
    a("s_add_u32 s87, s87, %d" % L.OF)
    a("s_waitcnt lgkmcnt(0)")
    a("s_sub_u32 s44, s32, 4096")
    a("s_subb_u32 s45, s33, 0")
    srd(a, 8, 44, 45, str(3584 * 2048 + 4096))
    a("s_sub_u32 s44, s26, 4096")
    a("s_subb_u32 s45, s27, 0")
    srd(a, 16, 44, 45, str(1024 * 2048 + 4096))
    srd(a, 60, 28, 29, str(4 << 20))
    srd(a, 64, 34, 35, str(2048))
    srd(a, 76, 56, 57, str(4 << 20))


class G2:
    NF, NS = 28, 8
    ACCF, ACCS = 64, 128
    XR, BR, PR, BF = 32, 48, 160, 192
    RDHI = 56
    VFLAG = 26
    Bst = [0, 32]
    A0 = 64

    def __init__(s, a, name, opts, fused=False):
        s.a, s.name, s.opts, s.fused = a, name, opts, fused
        s.q = VmQ()
        s.ld = "sc1" if fused else ""
        s.D = opts.get("g2D", 8)
        s.NU = opts.get("g2NU", 8)
        assert s.A0 + s.NU * 16 <= 256
        s.NT = s.NF + s.NS
        s.NUNITS = s.NF + 2 * s.NS
        s.nextu = 0

    def is_f(s, t):
        return t < s.NF

    def units(s, t):
        return [t] if t < s.NF else [s.NF + 2 * (t - s.NF), s.NF + 2 * (t - s.NF) + 1]

    def issue_B(s, t):
        if t >= s.NT:
            return []
        o = []
        f = s.is_f(t)
        for pi in range(4):
            ins = "buffer_load_dwordx4 v%d, %s, %s offen offset:%d lds ;B%d" % ((2 if f else 6) + pi, "s[8:11]" if f else "s[16:19]", "s22" if f else "s59", pi * 1024, t)
            if pi == 0:
                o.append(("M0:%d" % ((t % s.D) * 16384), ins))
            elif pi == 3:
                w = s.opts.get("g2win")
                if w and f and t % w == w - 1:
                    o.append((ins, "s_sub_u32 s22, s22, %d" % (131072 * (w - 1))))
                else:
                    o.append((ins, "s_add_u32 s22, s22, 131072" if f else "s_add_u32 s59, s59, 262144"))
            else:
                o.append(ins)
        return o

    def areg(s, u, ks, i):
        return s.A0 + (u % s.NU) * 16 + (ks * 2 + i) * 4

    def issue_U(s, u):
        if u >= s.NUNITS:
            return []
        f = u < s.NF
        o = []
        for ks in range(2):
            for i in range(2):
                o.append("buffer_load_dwordx4 %s, v%d, s[12:15], %s offen offset:%d %s ;A%d" % (
                    ar(s.areg(u, ks, i), 4), [1, 14][ks], "s21" if f else "s49", i * 1024, s.ld, u))
        w = s.opts.get("g2win")
        if w and f and u % w == w - 1:
            o[-1] = (o[-1], "s_sub_u32 s21, s21, %d" % (32768 * (w - 1)))
        else:
            o[-1] = (o[-1], "s_add_u32 s21, s21, 32768" if f else "s_add_u32 s49, s49, 32768")
        return o

    def issue_upto(s, lim):
        o = []
        while s.nextu < min(lim, s.NUNITS):
            o += s.issue_U(s.nextu)
            s.nextu += 1
        return o

    def reads(s, t, h):
        if t >= s.NT:
            return []
        o = []
        sl = t % s.D
        hi = sl >= 4
        for p2 in range(2):
            for e in range(4):
                for rd in range(2):
                    o.append("ds_read_b64_tr_b16 %s, v%d offset:%d" % (ar(s.Bst[h] + (p2 * 4 + e) * 4 + rd * 2, 2), (s.RDHI if hi else 10) + e, (sl % 4) * 16384 + rd * 8192 + (2 * h + p2) * 1024))
        return o

    def mfmas(s, t, h):
        o = []
        f = s.is_f(t)
        for p2 in range(2):
            for e in range(4):
                for i in range(2):
                    if f:
                        d = s.ACCF + ((p2 * 2 + i) * 4 + e) * 4
                        x = s.areg(t, h, i)
                    else:
                        d = s.ACCS + (i * 4 + e) * 4
                        x = s.areg(s.units(t)[h], p2, i)
                    o.append("v_mfma_f32_16x16x32_bf16 %s, %s, %s, %s" % (vr(d, 4), ar(s.Bst[h] + (p2 * 4 + e) * 4, 4), ar(x, 4), vr(d, 4)))
        return o

    def emit(s, lst):
        out = []
        for y in lst:
            for x in (y if isinstance(y, tuple) else (y,)):
                if x.startswith("M0:"):
                    ins = "s_add_u32 m0, s23, %s" % x[3:]
                    out.insert(max(len(out) - 1, 0), ins)
                else:
                    out.append(x)
        for x in out:
            o = s.opts
            if o.get("g2noR") and x.startswith("ds_read"): continue
            if o.get("g2noM") and x.startswith("v_mfma"): continue
            if o.get("g2noA") and ";A" in x: continue
            if o.get("g2noB") and ";B" in x: continue
            if o.get("g2l2") and x.startswith("s_add_u32 s2"): continue
            if o.get("g2l2") and x.startswith(("s_add_u32 s49", "s_add_u32 s59")): continue
            if x.startswith("buffer_"):
                s.q.issue(x.split(";")[1].strip())
            s.a(x)

    def wait(s, tags, lgkm=0):
        ns = [s.q.need(t) for t in tags]
        ns = [n for n in ns if n is not None]
        w = []
        if ns:
            w.append("vmcnt(%d)" % min(63, min(ns)))
        if lgkm is not None:
            w.append("lgkmcnt(%d)" % lgkm)
        if w:
            s.a("s_waitcnt " + " ".join(w))

    def macro(s, t, extra0=(), extra1=(), pre0=None):
        us = s.units(t)
        tl = s.opts.get("g2tail", 2)
        s.wait(["A%d" % us[0]])
        if pre0:
            pre0()
        if s.opts.get("tl"):
            s.a("s_memtime s[92:93]")
        fill = riffle(s.reads(t, 1), s.issue_upto(us[0] + s.NU) + list(extra0))
        s.emit(place(s.mfmas(t, 0), fill, tail=tl))
        s.wait(["B%d" % (t + 1), "A%d" % us[-1]])
        if s.opts.get("tl"):
            s.a("v_writelane_b32 v60, s92, %d" % t)
        mf = s.mfmas(t, 1)
        s.a(mf[0])
        if not s.opts.get("g2noBar"):
            s.a("s_barrier")
        more = s.issue_upto(us[-1] + s.NU) if len(us) > 1 else []
        fill = riffle(s.reads(t + 1, 0), s.issue_B(t + s.D) + more + list(extra1))
        s.emit(place(mf[1:], fill, tail=tl) if fill else mf[1:])

    def prologue(s):
        a = s.a
        for e in range(4):
            a("v_add_u32 v%d, 65536, v%d" % (s.RDHI + e, 10 + e))
        s.emit(["s_nop 0"] + s.issue_B(0))
        for t in range(max(s.D, s.NU) - 1):
            if t < s.NU - 1:
                s.emit(s.issue_upto(t + 1))
            if t + 1 < s.D:
                s.emit(["s_nop 0"] + s.issue_B(t + 1))

    def body(s):
        a, name, D = s.a, s.name, s.D
        for r in range(96):
            a("v_mov_b32 v%d, 0" % (s.ACCF + r))
        a("v_mov_b32 v27, 1")
        a("v_mov_b32 v28, 0")
        a("s_mov_b32 s74, -1")
        a("s_mov_b32 s75, 0")
        s.wait(["B0"], lgkm=None)
        a("s_barrier")
        for r in s.reads(0, 0):
            a(r)
        stamp(a, 1, s.opts)
        poll_o = "buffer_load_dword v%d, v25, s[12:15], s87 offen sc1 ;pollo" % s.VFLAG
        xl = []
        for i in range(2):
            for j in range(4):
                xl.append("buffer_load_dwordx2 %s, v17, s[60:63], s%d offen offset:%d ;x" % (vr(s.XR + (i * 4 + j) * 2, 2), 52 + i, j * 32))
        for j in range(4):
            xl.append("buffer_load_dwordx2 %s, v19, s[64:67], s51 offen offset:%d ;x" % (vr(s.BR + j * 2, 2), j * 32))
        pub = ["buffer_store_dwordx4 %s, v1, s[12:15], s%d offen offset:%d sc1 ;pub" % (vr(s.ACCF + 32 + q * 4, 4), 80 if q < 4 else 84, (q % 4) * 1024) for q in range(8)]
        flag = "buffer_store_dword v27, v28, s[12:15], s82 offen sc1 ;flag"
        poll_p = "buffer_load_dword v%d, v28, s[12:15], s83 offen sc1 ;pollp" % s.VFLAG
        getp = ["buffer_load_dwordx4 %s, v1, s[12:15], s%d offen offset:%d sc1 ;getp" % (vr(s.PR + q * 4, 4), 81 if q < 4 else 85, (q % 4) * 1024) for q in range(8)]

        def chk_o():
            if s.fused:
                s.wait(["pollo"], lgkm=None)
                spin(a, name + "_so", s.VFLAG, 25, "s87", "s[74:75]")

        def do_flag():
            s.wait(["pub"], lgkm=None)
            s.emit([flag])

        def chk_p():
            s.wait(["pollp"], lgkm=None)
            spin(a, name + "_sp", s.VFLAG, 28, "s83", "s[74:75]")

        tf = s.opts.get("tflag", 31)
        tp = s.opts.get("tpoll", 33)
        tg = s.opts.get("tget", 35)
        to = s.NF - s.NU + 1
        for t in range(0, 36):
            e0, e1, p0 = [], [], None
            if t == to - s.NU + 1 and s.fused: e0 = [poll_o]
            if t == to: p0 = chk_o
            if t == 28: e0 = pub
            if t == tf: p0 = do_flag
            if t == 29: e1 = xl
            if t == tp: e1 = list(e1) + [poll_p]
            if t == tg:
                p0 = chk_p; e0 = getp
            if t == 28:
                a("s_nop 7")
            s.macro(t, extra0=e0, extra1=e1, pre0=p0)
        stamp(a, 2, s.opts)
        if s.opts.get("tl"):
            a("s_memtime s[92:93]")
            a("s_waitcnt lgkmcnt(0)")
            a("v_writelane_b32 v60, s92, 36")
        a("s_mov_b32 s27, 0xffff0000")
        a("s_mov_b32 s58, 0xbfb8aa3b")
        BF, BR, XR, PR = s.BF, s.BR, s.XR, s.PR
        for j in range(4):
            a("v_lshlrev_b32 v%d, 16, v%d" % (BF + 4 * j, BR + 2 * j))
            a("v_and_b32 v%d, s27, v%d" % (BF + 4 * j + 1, BR + 2 * j))
            a("v_lshlrev_b32 v%d, 16, v%d" % (BF + 4 * j + 2, BR + 2 * j + 1))
            a("v_and_b32 v%d, s27, v%d" % (BF + 4 * j + 3, BR + 2 * j + 1))
        for q in range(8):
            for r in range(4):
                a("v_add_f32 v%d, v%d, v%d" % (s.ACCF + q * 4 + r, s.ACCF + q * 4 + r, BF + (q % 4) * 4 + r))
        U = s.ACCF + 32
        for q in range(8):
            x = XR + q * 2
            u = U + q * 4
            a("v_lshlrev_b32 v%d, 16, v%d" % (u, x))
            a("v_and_b32 v%d, s27, v%d" % (u + 1, x))
            a("v_lshlrev_b32 v%d, 16, v%d" % (u + 2, x + 1))
            a("v_and_b32 v%d, s27, v%d" % (u + 3, x + 1))
        nst = 0
        assert s.q.q[-8:] == ["getp"] * 8 or "getp" not in s.q.q, s.q.q
        for i in range(2):
            for jp in range(2):
                a("s_waitcnt vmcnt(%d)" % (6 - (i * 2 + jp) * 2 + nst + (1 if s.opts.get("stamp") else 0)))
                for j in (2 * jp, 2 * jp + 1):
                    q = i * 4 + j
                    f = s.ACCF + q * 4
                    t = PR + q * 4
                    for r in range(4):
                        a("v_add_f32 v%d, v%d, v%d" % (f + r, f + r, t + r))
                    for r in range(4):
                        a("v_mul_f32 v%d, s58, v%d" % (t + r, f + r))
                    for r in range(4):
                        a("v_exp_f32 v%d, v%d" % (t + r, t + r))
                    for r in range(4):
                        a("v_mul_f32 v%d, v%d, v%d" % (f + r, f + r, s.ACCS + q * 4 + r))
                    for r in range(4):
                        a("v_add_f32 v%d, 1.0, v%d" % (t + r, t + r))
                    for r in range(4):
                        a("v_rcp_f32 v%d, v%d" % (t + r, t + r))
                for j in (2 * jp, 2 * jp + 1):
                    q = i * 4 + j
                    f = s.ACCF + q * 4
                    for r in range(4):
                        a("v_fma_f32 v%d, v%d, v%d, v%d" % (f + r, f + r, PR + q * 4 + r, U + q * 4 + r))
                p, q2 = s.ACCF + (i * 4 + 2 * jp) * 4, s.ACCF + (i * 4 + 2 * jp + 1) * 4
                a("v_cvt_pk_bf16_f32 v%d, v%d, v%d" % (p, p, p + 1))
                a("v_cvt_pk_bf16_f32 v%d, v%d, v%d" % (p + 1, p + 2, p + 3))
                a("v_cvt_pk_bf16_f32 v%d, v%d, v%d" % (p + 2, q2, q2 + 1))
                a("v_cvt_pk_bf16_f32 v%d, v%d, v%d" % (p + 3, q2 + 2, q2 + 3))
                a("v_permlane16_swap_b32 v%d, v%d" % (p, p + 2))
                a("v_permlane16_swap_b32 v%d, v%d" % (p + 1, p + 3))
                a("buffer_store_dwordx4 %s, v24, s[76:79], s%d offen offset:%d" % (vr(p, 4), 52 + i, jp * 64))
                nst += 1


def gen_g2b(a, name, opts):
    kernel_begin(a, name)
    a("s_cmp_ge_u32 s2, 256")
    a("s_cbranch_scc1 %s_end" % name)
    a("s_load_dwordx2 s[30:31], s[0:1], %d" % KA["ws"])
    a("v_lshrrev_b32 v1, 6, v0")
    a("s_nop 0")
    a("v_readfirstlane_b32 s20, v1")
    g2_setup(a, opts)
    srd(a, 12, 30, 31, str(256 << 20))
    stamp(a, 0, opts)
    if opts.get("stamp"):
        a("s_waitcnt vmcnt(0)")
    g = G2(a, name, opts)
    g.prologue()
    g.body()
    if opts.get("tl"):
        a("s_lshl_b32 s42, s2, 10")
        a("s_lshl_b32 s43, s20, 8")
        a("s_add_u32 s42, s42, s43")
        a("s_add_u32 s42, s42, %d" % (L.STAMP + (1 << 20)))
        a("buffer_store_dword v60, v25, s[12:15], s42 offen")
    if opts.get("stamp"):
        a("s_waitcnt vmcnt(0)")
    stamp(a, 3, opts)
    a.lab(name + "_end")
    a("s_endpgm")
    return kd(name, 512, 256, 96)


def build(opts):
    a = A()
    launches = []
    kds = []
    kds.append(gen_ln(a, "ln_kernel"))
    launches.append(("ln_kernel", 128, 512, 1024))
    o = dict(opts); o["stamp_base"] = 0
    kds.append(gen_g1(a, "g1_kernel", o))
    launches.append(("g1_kernel", 256, 256, 131072))
    o = dict(opts); o["stamp_base"] = 65536
    kds.append(gen_att(a, "att_kernel", o))
    launches.append(("att_kernel", 256, 256, 0))
    o = dict(opts); o["stamp_base"] = 131072
    if opts.get("oldg2"):
        kds.append(gen_g2(a, "g2_kernel", o))
        launches.append(("g2_kernel", 256, 256, 98304))
    else:
        kds.append(gen_g2b(a, "g2_kernel", o))
        launches.append(("g2_kernel", 256, 256, 131072))
    import hazard
    a.l, n = hazard.fix(a.l, verbose=bool(opts.get("hv")))
    txt = HEADER
    for k, g, b, lds in launches:
        txt += "; @launch kernel=%s grid=(%d,1,1) block=(%d,1,1) lds=%d\n" % (k, g, b, lds)
    txt += '.amdgcn_target "amdgcn-amd-amdhsa--gfx950"\n.text\n'
    txt += a.text()
    txt += '.section .rodata,"a"\n'
    for k in kds:
        txt += ".p2align 6\n" + k
    return txt


if __name__ == "__main__":
    out = sys.argv[1]
    opts = {}
    for kv in sys.argv[2:]:
        k, _, v = kv.partition("=")
        try:
            v = int(v) if v else 1
        except ValueError:
            pass
        opts[k] = v
    open(out, "w").write(build(opts))
```

```python
import re

REG = re.compile(r"\b([vas])(?:(\d+)|\[(\d+):(\d+)\])")
TRANS = ("v_exp_f32", "v_log_f32", "v_rcp_f32", "v_rsq_f32", "v_sqrt_f32", "v_sin_f32", "v_cos_f32")


def regs(tok):
    out = []
    for m in REG.finditer(tok):
        p = m.group(1)
        if m.group(2) is not None:
            out.append((p, int(m.group(2))))
        else:
            out += [(p, r) for r in range(int(m.group(3)), int(m.group(4)) + 1)]
    if re.search(r"\bvcc\b", tok):
        out.append(("s", "vcc"))
    if re.search(r"\bm0\b", tok):
        out.append(("s", "m0"))
    if re.search(r"\bexec\b", tok):
        out.append(("s", "exec"))
    return out


class Ins:
    def __init__(s, line):
        s.line = line
        t = line.split(";")[0].strip()
        s.op = t.split()[0] if t else ""
        rest = t[len(s.op):].strip()
        ops = [o.strip() for o in rest.split(",")] if rest else []
        s.ops = ops
        op = s.op
        s.kind = None
        s.w, s.r = [], []
        s.srcc = []
        s.ab = []
        s.stdata = []
        if not op or op.endswith(":") or op.startswith("."):
            s.kind = "none"
        elif op.startswith("v_mfma"):
            s.kind = "mfma"
            s.w = regs(ops[0]); s.ab = regs(ops[1]) + regs(ops[2]); s.srcc = regs(ops[3]); s.r = s.ab + s.srcc
            s.passes = 8 if "32x32x16" in op else 4
        elif op.startswith("v_cmp"):
            s.kind = "valu"; s.w = regs(ops[0]); s.r = sum((regs(o) for o in ops[1:]), [])
        elif op.startswith("v_readfirstlane") or op.startswith("v_readlane"):
            s.kind = "valu"; s.w = regs(ops[0]); s.r = sum((regs(o) for o in ops[1:]), [])
        elif op.startswith("v_swap"):
            s.kind = "valu"; s.w = regs(ops[0]) + regs(ops[1]); s.r = list(s.w)
        elif op.startswith("v_permlane"):
            s.kind = "valu"; s.w = regs(ops[0]) + regs(ops[1]); s.r = list(s.w)
        elif op.startswith("v_"):
            s.kind = "valu"; s.w = regs(ops[0]); s.r = sum((regs(o) for o in ops[1:]), [])
            if op.startswith(("v_fmac", "v_writelane", "v_dot2c")):
                s.r += s.w
            if "_co_" in op:
                s.w += regs(ops[1])
        elif op.startswith(("buffer_load", "global_load")):
            s.kind = "vmem"
            if " lds" in (" " + rest) or "_lds_" in op:
                s.r = sum((regs(o) for o in ops), []) + [("s", "m0")]
                s.lds = True
            else:
                s.w = regs(ops[0]); s.r = sum((regs(o) for o in ops[1:]), [])
        elif op.startswith(("buffer_store", "buffer_atomic")):
            s.kind = "vmem"; s.r = sum((regs(o) for o in ops), [])
            if "x4" in op or "x3" in op:
                s.stdata = regs(ops[0])
            if "atomic" in op and "sc0" in rest:
                s.w = regs(ops[0])
        elif op.startswith(("global_store", "global_atomic")):
            s.kind = "vmem"; s.r = sum((regs(o) for o in ops), [])
            if "x4" in op or "x3" in op:
                s.stdata = regs(ops[1])
        elif op.startswith("ds_read") or op.startswith("ds_bpermute") or op.startswith("ds_swizzle"):
            s.kind = "ds"; s.w = regs(ops[0]); s.r = sum((regs(o) for o in ops[1:]), [])
        elif op.startswith("ds_"):
            s.kind = "ds"; s.r = sum((regs(o) for o in ops), [])
        elif op.startswith("buffer_"):
            s.kind = "vmem"
        elif op.startswith("s_"):
            s.kind = "salu"
            if op.startswith(("s_cmp", "s_cbranch", "s_branch", "s_waitcnt", "s_barrier", "s_nop", "s_endpgm", "s_setprio", "s_sleep")):
                s.r = sum((regs(o) for o in ops), [])
            else:
                s.w = regs(ops[0]); s.r = sum((regs(o) for o in ops[1:]), [])
        else:
            raise ValueError("unknown op " + line)
        s.states = 0 if s.kind == "none" else 1
        if op == "s_nop":
            s.states = int(ops[0]) + 1
        s.trans = op.startswith(TRANS)


def need(p, c):
    n = 0
    W = set(p.w)
    vw = {x for x in W if x[0] in "va"}
    sw = {x for x in W if x[0] == "s"}
    if p.kind == "valu":
        if c.kind == "mfma" and vw & set(c.r): n = max(n, 2)
        if c.op.startswith("v_permlane") and vw & set(c.r): n = max(n, 2)
        if c.op.startswith(("v_readfirstlane", "v_readlane")) and vw & set(c.r): n = max(n, 1)
        if "dpp" in c.line and c.kind == "valu" and vw & set(c.r): n = max(n, 2)
        if p.trans and c.kind in ("valu",) and not c.trans and vw & set(c.r): n = max(n, 1)
        if p.trans and c.kind == "mfma" and vw & set(c.r): n = max(n, 2)
        if c.kind == "vmem" and sw & set(c.r): n = max(n, 5)
        if c.kind == "valu" and sw & set(c.r):
            n = max(n, 4 if c.op.startswith(("v_readlane", "v_writelane")) else 2)
        if ("s", "exec") in sw and c.kind == "mfma": n = max(n, 4)
    if p.kind == "salu" and ("s", "m0") in sw and getattr(c, "lds", False): n = max(n, 1)
    if p.kind == "mfma":
        big = {4: 8, 8: 12}[p.passes]
        if c.kind == "mfma":
            if vw & set(c.ab): n = max(n, big)
            if vw & set(c.srcc) and not (set(c.srcc) == vw and c.passes == p.passes): n = max(n, big - 2)
        elif c.kind in ("valu", "vmem", "ds"):
            if vw & (set(c.r) | set(c.w)): n = max(n, big)
        if c.kind == "valu" and set(p.srcc) & set(c.w): n = max(n, {4: 3, 8: 7}[p.passes])
    if p.stdata and c.kind in ("valu", "mfma", "ds", "vmem") and set(p.stdata) & set(c.w): n = max(n, 2)
    return n


def fix(lines, verbose=False):
    out = []
    hist = []
    labels = {}
    added = 0
    for line in lines:
        ins = Ins(line)
        if ins.kind == "none":
            if ins.op.endswith(":"):
                labels[ins.op[:-1]] = len(out)
            out.append(line)
            continue
        req = 0
        for h in hist:
            req = max(req, need(h[0], ins) - h[1])
        if req > 0:
            out.append("    s_nop %d" % (req - 1))
            added += 1
            if verbose:
                print("hazard: +%d before %s" % (req, line.strip()))
            for h in hist:
                h[1] += req
        out.append(line)
        for h in hist:
            h[1] += ins.states
        hist.append([ins, 0])
        hist = [h for h in hist if h[1] < 20]
        if ins.op in ("s_branch", "s_endpgm"):
            pass
    insl = [Ins(l) for l in out]
    lab = {i.op[:-1]: k for k, i in enumerate(insl) if i.kind == "none" and i.op.endswith(":")}
    for k, i in enumerate(insl):
        if i.op.startswith(("s_branch", "s_cbranch")) and i.ops[0] in lab:
            prods = []
            el = 1
            j = k - 1
            while j >= 0 and el < 20:
                if insl[j].kind != "none":
                    prods.append((insl[j], el)); el += insl[j].states
                j -= 1
            el2 = 0
            j = lab[i.ops[0]]
            while j < len(insl) and el2 < 20:
                c = insl[j]
                if c.kind != "none":
                    for p, e in prods:
                        if need(p, c) > e + el2:
                            raise RuntimeError("hazard across branch %s: %s -> %s" % (i.line, p.line, c.line))
                    el2 += c.states
                    if c.op in ("s_branch", "s_endpgm"):
                        break
                j += 1
    return out, added
```

```python
MB = 1 << 20
XN = 0
Q = 4 * MB
K = 8 * MB
V = 12 * MB
KVH = 4 * MB
O = 16 * MB
H = 20 * MB
F = 36 * MB
STAMP = 128 * MB
FL = 34 * MB + 512 * 1024
FS = 4352
HF = FL
OF = FL + 16 * FS
QF = FL + 48 * FS
PF = FL + 56 * FS
FLSZ = 128 * FS
```

```python
import sys, math, struct
sys.path.insert(0, "dev")
import layout as L
from gen import A, vr, ar, kernel_begin, kd, HEADER, KA, gen_ln, VmQ, place, riffle, merge
import hazard

S = dict(sCode=52, cof=56, bad=58, wave=3, sA=4, sB=8, sWS=12, sAux=16, sW2=20, sWo=24, sX=28, sB2=32, sOut=36,
         offA=40, offB=41, m0b=42, ctr=43, t0=44, t1=45, t2=46, t3=47,
         ws=48,
         p0=50, p1=52, p2=54, p3=56, p4=58, p5=60,
         blk=62, nt=63, odd=64, seg0=65, seg1=66, seg2=67, seg3=68,
         gA=69, gO=70, gB=71, gBo=72, own=73, xo0=74, xo1=75, pw0=76, pw1=77, pr0=78, pr1=79,
         pfw=80, pfr=81, hfr=82, ofr=83, msk=84,
         sp=86, hmask=87, spm=88,
         c0=90, c1=91, tm=92,
         o0=96, o1=97, fl0=98, fl1=99, hal=100, big=101)


def s(n, k=0):
    return "s%d" % (S[n] + k)


def sq(n):
    return "s[%d:%d]" % (S[n], S[n] + 3)


def sp(n):
    return "s[%d:%d]" % (S[n], S[n] + 1)


def srd(a, d, lo, nrec):
    a("s_mov_b32 %s, s%d" % (s(d), lo))
    a("s_and_b32 %s, s%d, 0xffff" % (s(d, 1), lo + 1))
    a("s_mov_b32 %s, %s" % (s(d, 2), nrec))
    a("s_mov_b32 %s, 0x00020000" % s(d, 3))


def flagaddr(a, dst, idx, base, tmp):
    a("s_lshr_b32 %s, %s, 5" % (tmp, idx))
    a("s_mul_i32 %s, %s, %d" % (tmp, tmp, L.FS))
    a("s_and_b32 %s, %s, 31" % (dst, idx))
    a("s_lshl_b32 %s, %s, 2" % (dst, dst))
    a("s_add_u32 %s, %s, %s" % (dst, dst, tmp))
    a("s_add_u32 %s, %s, %d" % (dst, dst, base))


def f32(x):
    return "0x%08x" % struct.unpack("<I", struct.pack("<f", x))[0]


class MQ:
    def __init__(m):
        m.qs = [VmQ()]

    @property
    def q(m):
        return m.qs[0].q

    @q.setter
    def q(m, v):
        m.qs = [VmQ()]
        m.qs[0].q = list(v)

    def join(m, lists):
        m.qs = []
        for l in lists:
            x = VmQ(); x.q = list(l); m.qs.append(x)

    def issue(m, tag):
        for x in m.qs:
            x.issue(tag)

    def need(m, tag):
        ns = [x.need(tag) for x in m.qs]
        ns = [n for n in ns if n is not None]
        if not ns:
            return None
        n = min(ns)
        for x in m.qs:
            x.q = x.q[len(x.q) - n:] if n < len(x.q) else x.q
            if n == 0:
                x.q = []
        return n


class Em:
    def __init__(e, a, opts):
        e.a, e.opts, e.q = a, opts, MQ()
        e.tl = 0

    def emit(e, lst):
        out = []
        for y in lst:
            for x in (y if isinstance(y, tuple) else (y,)):
                if x.startswith("M0:"):
                    out.insert(max(len(out) - 1, 0), "s_add_u32 m0, %s, %s" % (s("m0b"), x[3:]))
                else:
                    out.append(x)
        for x in out:
            if callable(x):
                x()
                continue
            if x.startswith("buffer_"):
                e.q.issue(x.split(";")[1].strip())
                x = x.split(";")[0].rstrip()
            e.a(x)

    def wait(e, tags, lgkm=None):
        ns = [e.q.need(t) for t in tags]
        ns = [n for n in ns if n is not None]
        w = []
        if ns:
            w.append("vmcnt(%d)" % min(63, min(ns)))
        if lgkm is not None:
            w.append("lgkmcnt(%d)" % lgkm)
        if w:
            e.a("s_waitcnt " + " ".join(w))

    def mark(e, idx):
        if not e.opts.get("tl"):
            return
        e.a("s_memrealtime %s" % sp("tm"))
        e.a("s_waitcnt lgkmcnt(0)")
        e.a("v_writelane_b32 v31, %s, %d" % (s("tm"), idx))

    def spin(e, tag, vflag, voff, soff, first_loaded=True):
        a = e.a
        a("s_mov_b32 %s, 0" % s("sp"))
        if not first_loaded:
            a("s_branch %s_ld" % tag)
        a.lab(tag + "_chk")
        a("v_cmp_ne_u32 vcc, 0, v%d" % vflag)
        a("s_nop 1")
        a("s_andn2_b64 %s, %s, vcc" % (sp("spm"), sp("msk")))
        a("s_cbranch_scc0 %s_ok" % tag)
        a("s_add_u32 %s, %s, 1" % (s("sp"), s("sp")))
        a("s_cmp_gt_u32 %s, 0x20000" % s("sp"))
        a("s_cbranch_scc1 %s_ok" % tag)
        a("s_sleep %d" % e.opts.get("slp", 8))
        a.lab(tag + "_ld")
        a("buffer_load_dword v%d, v%d, %s, %s offen sc1" % (vflag, voff, sq("sWS"), soff))
        a("s_waitcnt vmcnt(0)")
        a("s_branch %s_chk" % tag)
        a.lab(tag + "_ok")


VL16, VB, VRD, VA1, VA2, VGF, VRDH, VL4, VZERO, VT = 1, 2, 6, 12, 13, 14, 18, 24, 25, 27
VONE, VFLAG = 26, 0
VGR, VL16B = 6, 10


def roll(a, blocks, U, tag, minrep=2):
    import re
    rx = re.compile(r"vmcnt\((\d+)\)")
    norm = [[rx.sub("vmcnt()", x) for x in b] for b in blocks]
    best = (0, 0)
    for p in range(len(blocks)):
        n = 1
        while p + (n + 1) * U <= len(blocks) and norm[p + n * U:p + (n + 1) * U] == norm[p:p + U]:
            n += 1
        if n >= best[1]:
            best = (p, n)
    p, n = best
    if n < minrep:
        for b in blocks:
            a.l += b
        return
    for b in blocks[:p]:
        a.l += b
    a("s_mov_b32 %s, %d" % (s("ctr"), n))
    a.lab(tag + "_lp")
    for k in range(U):
        for li, x in enumerate(blocks[p + k]):
            if rx.search(x):
                v = min(int(rx.search(blocks[p + k + r * U][li]).group(1)) for r in range(n))
                x = rx.sub("vmcnt(%d)" % v, x)
            a.l.append(x)
    a("s_sub_u32 %s, %s, 1" % (s("ctr"), s("ctr")))
    a("s_cmp_lg_u32 %s, 0" % s("ctr"))
    a("s_cbranch_scc1 %s_lp" % tag)
    for b in blocks[p + n * U:]:
        a.l += b


def capture(a, fn):
    keep = a.l
    a.l = []
    fn()
    out = a.l
    a.l = keep
    return out


class G1:
    ACC0 = 32
    NK = 32

    def __init__(g, e, tag, segs, pitch, MI, D, T, slots, vfrags=()):
        g.e, g.a, g.tag, g.segs, g.pitch, g.MI, g.D, g.T = e, e.a, tag, segs, pitch, MI, D, T
        g.frs = [(si, k) for si, t in enumerate(segs) for k in range(4 if t == "F" else 2)]
        g.NJ = len(g.frs)
        g.REG = len(segs) * 1024
        g.slots = slots
        g.HI = min(x for x in slots if x >= 65536)
        g.vfrags = set(vfrags)
        g.Bst = [0, g.NJ * 4]
        g.A0 = 2 * g.NJ * 4
        assert len(slots) == D and g.A0 + D * MI * 4 <= 248 and g.ACC0 + MI * g.NJ * 4 <= 256
        assert 2 * T <= g.NJ
        g.na = g.nb = 0

    def acc(g, i, j):
        return g.ACC0 + (j * g.MI + i) * 4

    def B_upto(g, lim, maxn=99):
        o = []
        n = len(g.segs)
        while g.nb < min(lim, g.NK) and maxn > 0:
            t = g.nb
            for si in range(n):
                grp = ["buffer_load_dwordx4 v%d, %s, %s offen offset:%d lds ;B%d" % (VB + si, sq("sB"), s("offB"), si * 1024, t)]
                if si == 0:
                    grp = ["M0:%d" % g.slots[t % g.D]] + grp
                if si == n - 1:
                    grp.append("s_add_u32 %s, %s, %d" % (s("offB"), s("offB"), 32 * g.pitch))
                o.append(tuple(grp))
            g.nb += 1
            maxn -= 1
        return o

    def areg(g, t, i):
        return g.A0 + ((t % g.D) * g.MI + i) * 4

    def A_upto(g, lim, maxn=99):
        o = []
        while g.na < min(lim, g.NK) and maxn > 0:
            t = g.na
            for i in range(g.MI):
                o.append("buffer_load_dwordx4 %s, v%d, %s, %s offen offset:%d ;A%d" % (ar(g.areg(t, i), 4), VA1 + i // 4, sq("sA"), s("offA"), (i % 4) * 1024, t))
            o[-1] = (o[-1], "s_add_u32 %s, %s, 16384" % (s("offA"), s("offA")))
            g.na += 1
            maxn -= 1
        return o

    def read(g, t, j, dst):
        si, k = g.frs[j]
        sl = g.slots[t % g.D]
        hi = sl >= 65536
        base = (VRDH if hi else VRD) + (k if g.segs[si] == "F" else 4 + k)
        return ["ds_read_b64_tr_b16 %s, v%d offset:%d" % (ar(dst + rd * 2, 2), base, sl - (g.HI if hi else 0) + rd * 2 * g.REG + si * 1024) for rd in range(2)]

    def reads(g, t):
        return sum((g.read(t, j, g.Bst[t % 2] + j * 4) for j in range(g.NJ)), [])

    def mfma(g, t, i, j, w, c=None):
        x, d = ar(g.areg(t, i), 4), vr(g.acc(i, j), 4)
        p, q = (x, ar(w, 4)) if j in g.vfrags else (ar(w, 4), x)
        return "v_mfma_f32_16x16x32_bf16 %s, %s, %s, %s" % (d, p, q, c or d)

    def mfmas(g, t, first=None):
        return [g.mfma(t, i, j, g.Bst[t % 2] + j * 4, {"zero": "0", "bias": vr(g.acc(g.MI - 1, j), 4), None: None}[first])
                for j in range(g.NJ) for i in range(g.MI)]

    def treg(g, c, jj, tt):
        return g.Bst[(g.NK - g.T + c) % 2] + (tt * 2 + jj) * 4

    def treads(g, c, js):
        return sum((g.read(g.NK - g.T + tt, j, g.treg(c, jj, tt)) for tt in range(g.T) for jj, j in enumerate(js)), [])

    def step(g, t, first, extra, groups):
        e, D = g.e, g.D
        last = t == g.NK - g.T - 1
        e.wait(["A%d" % t, "B%d" % (g.NK - 1 if last else t + 1)], lgkm=0)
        mf = g.mfmas(t, first)
        e.emit(mf[:2])
        g.a("s_barrier")
        r = 2 if t % 2 else 1
        rds = g.treads(0, groups[0][0]) if last else g.reads(t + 1)
        fill = riffle(rds, g.B_upto(t + D + 1, r) + g.A_upto(t + D, 3 - r) + list(extra))
        e.emit(place(mf[2:], fill, tail=6))

    def prologue(g, mid=None, depth=3):
        e = g.e
        e.emit(["s_nop 0"] + g.B_upto(1))
        if mid:
            mid()
        for t in range(depth):
            e.emit(["s_nop 0"] + g.B_upto(t + 2))
            e.emit(g.A_upto(t + 1))

    def run(g, first, extra, groups, tail_extra=()):
        e, a = g.e, g.a
        e.wait(["B0"])
        a("s_barrier")
        e.emit(g.reads(0))
        e.mark(1)
        blocks = [capture(a, lambda: g.step(t, first if t == 0 else None, extra(t), groups)) for t in range(g.NK - g.T)]
        U = g.D if g.D % 2 == 0 else 2 * g.D
        roll(a, blocks, U, g.tag)
        assert g.na == g.NK and g.nb == g.NK
        e.mark(6)
        t0 = g.NK - g.T
        pend = []
        tail_extra = list(tail_extra)
        for c, (js, units) in enumerate(groups):
            e.wait(["A%d" % (g.NK - 1)] if c == 0 else [], lgkm=0)
            nxt = g.treads(c + 1, groups[c + 1][0]) if c + 1 < len(groups) else []
            nu = len(units)
            for k, (tiles, epi) in enumerate(units):
                mf = [g.mfma(t0 + tt, i, j, g.treg(c, js.index(j), tt)) for (i, j) in tiles for tt in range(g.T)]
                nr = -(-len(nxt) // max(nu - max(nu // 4, 1) - k, 1)) if nxt else 0
                rd, nxt = nxt[:nr], nxt[nr:]
                ep = pend.pop(0) if len(pend) > 1 else []
                tx = [tail_extra.pop(0)] if tail_extra else []
                fill = riffle(ep, rd + tx)
                e.emit(place(mf, fill) if fill else mf)
                pend.append(epi)
            assert not nxt
        e.mark(2)
        for ep in pend:
            e.emit(ep)
        e.emit(tail_extra)


def rd_bases(a, dstF, dstH, REG, base):
    a("v_lshrrev_b32 v27, 6, v%d" % VL16)
    a("v_and_b32 v27, 7, v27")
    a("v_lshrrev_b32 v28, 9, v%d" % VL16)
    a("v_mul_u32_u24 v28, %d, v28" % REG)
    a("v_bfe_u32 v29, v%d, 4, 2" % VL16)
    a("v_lshl_add_u32 v28, v29, 3, v28")
    if base:
        a("v_add_u32 v28, %d, v28" % base)
    a("v_lshl_add_u32 v29, v27, 7, v28")
    a("v_lshrrev_b32 v30, 1, v27")
    for k in range(4):
        a("v_xor_b32 v%d, %d, v30" % (dstF + k, k))
        a("v_lshl_add_u32 v%d, v%d, 5, v29" % (dstF + k, dstF + k))
    if dstH is not None:
        a("v_lshl_add_u32 v29, v27, 6, v28")
        a("v_lshrrev_b32 v30, 2, v27")
        for k in range(2):
            a("v_xor_b32 v%d, %d, v30" % (dstH + k, k))
            a("v_lshl_add_u32 v%d, v%d, 5, v29" % (dstH + k, dstH + k))


def dma_full(a, dst, pitch):
    a("v_lshrrev_b32 v27, 7, v%d" % VL16)
    a("v_bfe_u32 v28, v%d, 4, 3" % VL16)
    a("v_and_b32 v29, 6, v27")
    a("v_xor_b32 v28, v28, v29")
    a("s_lshl_b32 %s, %s, 3" % (s("t0"), s("wave")))
    a("v_add_u32 v27, %s, v27" % s("t0"))
    a("v_mul_u32_u24 v27, %d, v27" % pitch)
    a("v_lshl_add_u32 v%d, v28, 4, v27" % dst)


def dma_half(a, dst, pitch):
    a("v_lshrrev_b32 v27, 6, v%d" % VL16)
    a("v_bfe_u32 v28, v%d, 4, 2" % VL16)
    a("v_lshrrev_b32 v29, 7, v%d" % VL16)
    a("v_and_b32 v29, 2, v29")
    a("v_xor_b32 v28, v28, v29")
    a("s_lshl_b32 %s, %s, 3" % (s("t0"), s("wave")))
    a("v_add_u32 v27, %s, v27" % s("t0"))
    a("v_mul_u32_u24 v27, %d, v27" % pitch)
    a("v_lshl_add_u32 v27, v28, 4, v27")
    a("v_lshrrev_b32 v28, 9, v%d" % VL16)
    a("v_lshlrev_b32 v28, 31, v28")
    a("v_or_b32 v%d, v27, v28" % dst)


class G2:
    NF, NS = 28, 8
    ACCF, ACCS = 64, 128
    XR, BR, PR, BF = 32, 48, 160, 192
    VGS, RDHI, VBI, VOUT = 56, 60, 209, 210
    Bst = [0, 32]
    A0, NU, D = 128, 8, 8
    SLOTS = [131072, 147456, 98304, 114688, 0, 16384, 32768, 49152]
    HI = 98304

    def __init__(g, e, name):
        g.e, g.a, g.name, g.opts = e, e.a, name, e.opts
        g.NT = g.NF + g.NS
        g.NUNITS = g.NF + 2 * g.NS
        g.asym = g.opts.get("asym", 0)
        g.BD = g.opts.get("BD", 4)
        g.UD = g.opts.get("UD", 4)
        assert g.BD <= g.D and g.UD <= g.NU
        g.start(0)

    def start(g, t0):
        g.t0 = g.nextu = g.nextb = t0

    def slot(g, t):
        return g.SLOTS[(t - g.asym) % g.D]

    def units(g, t):
        return [t] if t < g.NF else [g.NF + 2 * (t - g.NF), g.NF + 2 * (t - g.NF) + 1]

    def issue_B(g, t):
        o = []
        f = t < g.NF
        for pi in range(4):
            ins = "buffer_load_dwordx4 v%d, %s, %s offen offset:%d lds ;b%d" % ((VGF if f else g.VGS) + pi, sq("sW2") if f else sq("sWo"), s("gB") if f else s("gBo"), pi * 1024, t)
            if pi == 0:
                o.append(("M0:%d" % g.slot(t), ins))
            elif pi == 3:
                o.append((ins, "s_add_u32 %s, %s, 131072" % (s("gB"), s("gB")) if f else "s_add_u32 %s, %s, 262144" % (s("gBo"), s("gBo"))))
            else:
                o.append(ins)
        return o

    def B_upto(g, lim, maxn=99):
        o = []
        while g.nextb < min(lim, g.NT) and maxn > 0:
            o += g.issue_B(g.nextb)
            g.nextb += 1
            maxn -= 1
        return o

    def areg(g, u, ks, i):
        return g.A0 + ((u - g.asym + 3) % g.NU) * 16 + (ks * 2 + i) * 4

    def issue_U(g, u):
        f = u < g.NF
        so = s("gA") if f else s("gO")
        o = []
        for ks in range(2):
            for i in range(2):
                o.append("buffer_load_dwordx4 %s, v%d, %s, %s offen offset:%d sc1 ;a%d" % (ar(g.areg(u, ks, i), 4), [VL16, VL16B][ks], sq("sWS"), so, i * 1024, u))
        o[-1] = (o[-1], "s_add_u32 %s, %s, 32768" % (so, so))
        return o

    def U_upto(g, lim, maxn=99):
        o = []
        while g.nextu < min(lim, g.NUNITS) and maxn > 0:
            o += g.issue_U(g.nextu)
            g.nextu += 1
            maxn -= 1
        return o

    def reads(g, t, h):
        if t >= g.NT:
            return []
        o = []
        sl = g.slot(t)
        hi = sl >= g.HI
        for p2 in range(2):
            for k in range(4):
                for rd in range(2):
                    o.append("ds_read_b64_tr_b16 %s, v%d offset:%d" % (ar(g.Bst[h] + (p2 * 4 + k) * 4 + rd * 2, 2), (g.RDHI if hi else VGR) + k, sl - (g.HI if hi else 0) + rd * 8192 + (2 * h + p2) * 1024))
        return o

    def mfmas(g, t, h):
        o = []
        f = t < g.NF
        for p2 in range(2):
            for k in range(4):
                for i in range(2):
                    if f:
                        d = g.ACCF + ((p2 * 2 + i) * 4 + k) * 4
                        x = g.areg(t, h, i)
                        first = False
                    else:
                        d = g.ACCS + (i * 4 + k) * 4
                        x = g.areg(g.units(t)[h], p2, i)
                        first = t == g.NF and h == 0 and p2 == 0
                    o.append("v_mfma_f32_16x16x32_bf16 %s, %s, %s, %s" % (vr(d, 4), ar(g.Bst[h] + (p2 * 4 + k) * 4, 4), ar(x, 4), "0" if first else vr(d, 4)))
        return o

    def macro(g, t, extra0=(), extra1=(), pre0=None, ulim=999):
        e = g.e
        us = g.units(t)
        e.wait(["a%d" % us[0]], lgkm=0)
        if pre0:
            pre0()
        if g.opts.get("tl2") and t >= 0:
            g.a("s_memtime s[94:95]")
        ahead = g.units(min(t + g.UD, g.NT - 1))[-1] + 1
        fill = riffle(g.reads(t, 1), g.U_upto(min(us[0] + g.NU, ahead, ulim), 1) + list(extra0))
        e.emit(place(g.mfmas(t, 0), fill, tail=2))
        e.wait(["b%d" % (t + 1), "a%d" % us[-1]], lgkm=0)
        if g.opts.get("tl2") and t >= 0:
            g.a("v_writelane_b32 v31, s94, %d" % t)
        mf = g.mfmas(t, 1)
        g.a(mf[0])
        g.a("s_barrier")
        more = g.U_upto(min(us[-1] + g.NU, ahead, ulim), 1)
        fill = riffle(g.reads(t + 1, 0), g.B_upto(t + g.BD + 1) + more + list(extra1))
        e.emit(place(mf[1:], fill, tail=2) if fill else mf[1:])

    def scalar_setup(g):
        a = g.a
        T0, T1, T2, T3 = s("t0"), s("t1"), s("t2"), s("t3")
        if g.opts.get("mix"):
            a("s_bfe_u32 %s, s2, 0x20001" % T0)
            a("s_lshl_b32 %s, %s, 2" % (T0, T0))
            a("s_bfe_u32 %s, s2, 0x20004" % T1)
            a("s_add_u32 %s, %s, %s" % (T0, T0, T1))
            a("s_and_b32 %s, s2, 1" % T1)
            a("s_lshl_b32 %s, %s, 2" % (T1, T1))
            a("s_lshr_b32 %s, s2, 6" % T2)
            a("s_add_u32 %s, %s, %s" % (T1, T1, T2))
            a("s_bfe_u32 %s, s2, 0x10003" % T2)
        else:
            a("s_bfe_u32 %s, s2, 0x20001" % T0)
            a("s_lshl_b32 %s, %s, 2" % (T0, T0))
            a("s_bfe_u32 %s, s2, 0x20003" % T1)
            a("s_add_u32 %s, %s, %s" % (T0, T0, T1))
            a("s_lshr_b32 %s, s2, 5" % T1)
            a("s_and_b32 %s, s2, 1" % T2)
        a("s_lshl_b32 %s, %s, 8" % (s("own"), T1))
        a("s_lshl_b32 %s, %s, 7" % (T3, T2))
        a("s_add_u32 %s, %s, %s" % (s("own"), s("own"), T3))
        a("s_lshl_b32 %s, %s, 3" % (T3, T0))
        a("s_add_u32 %s, %s, %s" % (T3, T3, T1))
        a("s_lshl_b32 %s, %s, 1" % (T3, T3))
        a("s_add_u32 %s, %s, %s" % (T3, T3, T2))
        a("s_lshl_b32 %s, %s, 2" % (T3, T3))
        a("s_add_u32 %s, %s, %s" % (T3, T3, s("wave")))
        a("s_lshl_b32 %s, %s, 12" % (s("pw0"), T3))
        a("s_xor_b32 %s, %s, 16384" % (s("pr0"), s("pw0")))
        a("s_add_u32 %s, %s, %d" % (s("pw0"), s("pw0"), L.F))
        a("s_add_u32 %s, %s, %d" % (s("pr0"), s("pr0"), L.F))
        flagaddr(a, s("pfw"), T3, L.PF, s("pfr"))
        a("s_xor_b32 %s, %s, 16" % (s("pfr"), s("pfw")))
        a("s_lshl_b32 %s, %s, 18" % (s("xo0"), T0))
        a("s_lshl_b32 %s, %s, 16" % (T3, s("wave")))
        a("s_add_u32 %s, %s, %s" % (s("xo0"), s("xo0"), T3))
        a("s_add_u32 %s, %s, %s" % (s("xo0"), s("xo0"), s("own")))
        a("s_add_u32 %s, %s, 32768" % (s("xo1"), s("xo0")))
        a("s_lshl_b32 %s, %s, 1" % (T3, T0))
        a("s_lshr_b32 %s, %s, 1" % (T1, s("wave")))
        a("s_add_u32 %s, %s, %s" % (T3, T3, T1))
        a("s_mul_i32 %s, %s, %d" % (s("ofr"), T3, L.FS))
        a("s_add_u32 %s, %s, %d" % (s("ofr"), s("ofr"), L.OF))
        a("s_mul_i32 %s, %s, %d" % (s("hfr"), T0, L.FS))
        a("s_add_u32 %s, %s, %d" % (s("hfr"), s("hfr"), L.HF))
        kt = 2 * (g.NF + g.asym)
        ma = (1 << ((kt + 6) // 7)) - 1
        mb = 0xffff & ~((1 << (kt // 7)) - 1)
        a("s_cmp_eq_u32 %s, 0" % T2)
        a("s_mov_b32 %s, 0x%x" % (s("hmask"), mb * 0x10001))
        a("s_cselect_b32 %s, 0x%x, %s" % (s("hmask"), ma * 0x10001, s("hmask")))
        a("s_and_b32 %s, %s, 1" % (T3, T0))
        a("s_lshl_b32 %s, %s, 13" % (T3, T3))
        a("s_lshl_b32 %s, %s, 11" % (T1, s("wave")))
        a("s_add_u32 %s, %s, %s" % (T3, T3, T1))
        a("s_lshr_b32 %s, %s, 1" % (T0, T0))
        a("s_lshl_b32 %s, %s, 19" % (s("gO"), T0))
        a("s_add_u32 %s, %s, %s" % (s("gO"), s("gO"), T3))
        a("s_add_u32 %s, %s, %d" % (s("gO"), s("gO"), L.O))
        a("s_mul_i32 %s, %s, 112" % (s("gA"), T0))
        a("s_mul_i32 %s, %s, %d" % (T1, T2, 2 * (g.NF + g.asym)))
        a("s_add_u32 %s, %s, %s" % (s("gA"), s("gA"), T1))
        a("s_lshl_b32 %s, %s, 14" % (s("gA"), s("gA")))
        a("s_add_u32 %s, %s, %s" % (s("gA"), s("gA"), T3))
        a("s_add_u32 %s, %s, %d" % (s("gA"), s("gA"), L.H))
        a("s_mul_i32 %s, %s, %d" % (s("gB"), T2, (g.NF + g.asym) * 131072))
        a("s_mov_b32 %s, 0" % s("gBo"))

    def srds(g):
        a = g.a
        srd(a, "sX", S["p0"], str(4 << 20))
        for p, d, n in (("p1", "sWo", 1024 * 2048 + 4096), ("p2", "sW2", 3584 * 2048 + 4096)):
            a("s_sub_u32 %s, %s, 4096" % (s(p), s(p)))
            a("s_subb_u32 %s, %s, 0" % (s(p, 1), s(p, 1)))
            srd(a, d, S[p], str(n))
        srd(a, "sB2", S["p3"], "2048")
        srd(a, "sOut", S["p4"], str(4 << 20))

    def lane_setup_early(g):
        a = g.a
        dma_full(a, 30, 2048)
        for pi in range(4):
            a("s_xor_b32 %s, %s, %d" % (s("t0"), s("own"), 128 if pi % 2 else 0))
            a("s_add_u32 %s, %s, %d" % (s("t0"), s("t0"), 4096 - pi * 1024 + (pi // 2) * 65536))
            a("v_add_u32 v%d, %s, v30" % (VGF + pi, s("t0")))

    def lane_setup_late(g):
        a = g.a
        for pi in range(4):
            a("v_add_u32 v%d, %d, v%d" % (g.VGS + pi, pi * (65536 - 1024), VGF))
            a("v_add_u32 v%d, %d, v%d" % (g.RDHI + pi, g.HI, VGR + pi))
        a("v_bfe_u32 v27, v%d, 4, 4" % VL16)
        a("v_bfe_u32 v28, v%d, 8, 1" % VL16)
        a("v_lshrrev_b32 v29, 9, v%d" % VL16)
        a("v_lshlrev_b32 v%d, 5, v28" % g.VBI)
        a("v_lshl_add_u32 v%d, v29, 4, v%d" % (g.VBI, g.VBI))
        a("v_lshl_add_u32 v%d, v27, 11, v%d" % (g.VOUT, g.VBI))
        for r in range(64):
            a("v_mov_b32 v%d, 0" % (g.ACCF + r))
        a("s_mov_b32 %s, -1" % s("msk"))

    def first_reads(g):
        e = g.e
        e.wait(["b%d" % g.t0])
        g.a("s_barrier")
        e.emit(g.reads(g.t0, 0))

    def body(g, tj):
        e, a, name = g.e, g.a, g.name
        e.mark(8)
        WS = sq("sWS")
        poll_o = "buffer_load_dword v%d, v%d, %s, %s offen sc1 ;pollo" % (VFLAG, VL4, WS, s("ofr"))
        xl = []
        for i in range(2):
            for jp in range(2):
                xl.append("buffer_load_dwordx4 %s, v%d, %s, %s offen offset:%d ;x" % (vr(g.XR + (i * 2 + jp) * 4, 4), g.VOUT, sq("sX"), s("xo%d" % i), jp * 64))
        for jp in range(2):
            xl.append("buffer_load_dwordx4 %s, v%d, %s, %s offen offset:%d ;x" % (vr(g.BR + jp * 4, 4), g.VBI, sq("sB2"), s("own"), jp * 64))
        pub = []
        for q in range(4):
            p = g.ACCF + 32 + q * 8
            pub.append(tuple(["v_cvt_pk_bf16_f32 v%d, v%d, v%d" % (p + r, p + 2 * r, p + 2 * r + 1) for r in range(4)] +
                             ["buffer_store_dwordx4 %s, v%d, %s, %s offen offset:%d sc1 ;pub" % (vr(p, 4), VL16, WS, s("pw0"), q * 1024)]))
        flag = "buffer_store_dword v%d, v%d, %s, %s offen sc1 ;flag" % (VONE, VZERO, WS, s("pfw"))
        poll_p = "buffer_load_dword v%d, v%d, %s, %s offen sc1 ;pollp" % (VFLAG, VZERO, WS, s("pfr"))
        getp = ["buffer_load_dwordx4 %s, v%d, %s, %s offen offset:%d sc1 ;getp" % (vr(g.PR + q * 8 + 4, 4), VL16, WS, s("pr0"), q * 1024) for q in range(4)]
        oflags = ["buffer_store_dword v%d, v%d, %s, %s offen sc1 ;fl" % (VONE, VZERO, WS, s(k)) for k in ("seg0", "seg3")]

        def chk_o():
            e.wait(["pollo"])
            e.spin(name + "_so", VFLAG, VL4, s("ofr"))

        def do_flag():
            e.wait(["pub"])
            e.emit([flag])

        def do_oflag():
            e.wait(["o"])
            e.emit(oflags)

        def chk_p():
            e.wait(["pollp"])
            e.spin(name + "_sp", VFLAG, VZERO, s("pfr"))

        o = g.opts
        tf, tp, tg = o.get("tflag", 32), o.get("tpoll", 34), o.get("tget", 35)
        to = g.NF - g.UD
        pubs = [[x] for x in pub]
        blocks = []
        for t in range(tj, 36):
            e0, e1, p0 = [], [], None
            if t == tj + 2: p0 = do_oflag
            if t == to - 3: e0 = [poll_o]
            if t == to: p0 = chk_o
            if t >= 28 and pubs: e0 = pubs.pop(0)
            if t >= 28 and pubs: e1 = pubs.pop(0)
            if t == tf: p0 = do_flag
            if t == 32: e1 = list(e1) + xl[:3]
            if t == 33: e0 = list(e0) + xl[3:]
            if t == tp: e0 = list(e0) + [poll_p]
            if t == tg:
                p0 = chk_p; e0 = getp
            def blk():
                if t == 28:
                    a("s_nop 7")
                    e.mark(9)
                g.macro(t, extra0=e0, extra1=e1, pre0=p0, ulim=g.NF if t < to else 999)
            blocks.append(capture(a, blk))
        roll(a, blocks, 8, name)
        e.mark(10)
        a("s_mov_b32 %s, 0xffff0000" % s("c0"))
        a("s_mov_b32 %s, 0xbfb8aa3b" % s("c1"))
        BF, BR, XR, PR, C0, C1 = g.BF, g.BR, g.XR, g.PR, s("c0"), s("c1")
        for b in list(range(XR, XR + 16, 4)) + [BR, BR + 4]:
            a("v_permlane16_swap_b32 v%d, v%d" % (b, b + 2))
            a("v_permlane16_swap_b32 v%d, v%d" % (b + 1, b + 3))
        for j in range(4):
            a("v_lshlrev_b32 v%d, 16, v%d" % (BF + 4 * j, BR + 2 * j))
            a("v_and_b32 v%d, %s, v%d" % (BF + 4 * j + 1, C0, BR + 2 * j))
            a("v_lshlrev_b32 v%d, 16, v%d" % (BF + 4 * j + 2, BR + 2 * j + 1))
            a("v_and_b32 v%d, %s, v%d" % (BF + 4 * j + 3, C0, BR + 2 * j + 1))
        for q in range(8):
            for r in range(4):
                a("v_add_f32 v%d, v%d, v%d" % (g.ACCF + q * 4 + r, g.ACCF + q * 4 + r, BF + (q % 4) * 4 + r))
        U = g.ACCF + 32
        for q in range(8):
            x, u = XR + q * 2, U + q * 4
            a("v_lshlrev_b32 v%d, 16, v%d" % (u, x))
            a("v_and_b32 v%d, %s, v%d" % (u + 1, C0, x))
            a("v_lshlrev_b32 v%d, 16, v%d" % (u + 2, x + 1))
            a("v_and_b32 v%d, %s, v%d" % (u + 3, C0, x + 1))
        assert e.q.q[-4:] == ["getp"] * 4 and "x" not in e.q.q, e.q.q
        nst = 0
        for i in range(2):
            for jp in range(2):
                a("s_waitcnt vmcnt(%d)" % (3 - (i * 2 + jp) + nst))
                pb = PR + (i * 2 + jp) * 8
                for r in range(4):
                    a("v_lshlrev_b32 v%d, 16, v%d" % (pb + 2 * r, pb + 4 + r))
                    a("v_and_b32 v%d, %s, v%d" % (pb + 2 * r + 1, C0, pb + 4 + r))
                for j in (2 * jp, 2 * jp + 1):
                    q = i * 4 + j
                    f, t = g.ACCF + q * 4, PR + q * 4
                    for r in range(4):
                        a("v_add_f32 v%d, v%d, v%d" % (f + r, f + r, t + r))
                    for r in range(4):
                        a("v_mul_f32 v%d, %s, v%d" % (t + r, C1, f + r))
                    for r in range(4):
                        a("v_exp_f32 v%d, v%d" % (t + r, t + r))
                    for r in range(4):
                        a("v_mul_f32 v%d, v%d, v%d" % (f + r, f + r, g.ACCS + q * 4 + r))
                    for r in range(4):
                        a("v_add_f32 v%d, 1.0, v%d" % (t + r, t + r))
                    for r in range(4):
                        a("v_rcp_f32 v%d, v%d" % (t + r, t + r))
                for j in (2 * jp, 2 * jp + 1):
                    q = i * 4 + j
                    f = g.ACCF + q * 4
                    for r in range(4):
                        a("v_fma_f32 v%d, v%d, v%d, v%d" % (f + r, f + r, PR + q * 4 + r, U + q * 4 + r))
                p, q2 = g.ACCF + (i * 4 + 2 * jp) * 4, g.ACCF + (i * 4 + 2 * jp + 1) * 4
                a("v_cvt_pk_bf16_f32 v%d, v%d, v%d" % (p, p, p + 1))
                a("v_cvt_pk_bf16_f32 v%d, v%d, v%d" % (p + 1, p + 2, p + 3))
                a("v_cvt_pk_bf16_f32 v%d, v%d, v%d" % (p + 2, q2, q2 + 1))
                a("v_cvt_pk_bf16_f32 v%d, v%d, v%d" % (p + 3, q2 + 2, q2 + 3))
                a("v_permlane16_swap_b32 v%d, v%d" % (p, p + 2))
                a("v_permlane16_swap_b32 v%d, v%d" % (p + 1, p + 3))
                a("buffer_store_dwordx4 %s, v%d, %s, %s offen offset:%d" % (vr(p, 4), g.VOUT, sq("sOut"), s("xo%d" % i), jp * 64))
                nst += 1


LK, LV, LQ, LRING = 0, 49152, 98304, 131072
CU, CD, ONES, VKA, VVA, VQA = 224, 228, 232, 252, 253, 254
VA0, KA0, QA0 = 0, 80, 160 - 16
VA0, QA0, KA0 = 0, 80, 96
QF0 = 176
QSCALE = (32 ** -0.5) * math.log2(math.e)


def att_consts(a):
    a("s_lshl_b32 %s, %s, 12" % (s("t0"), s("wave")))
    a("v_add_u32 v%d, %s, v%d" % (VKA, s("t0"), VL16))
    a("v_add_u32 v%d, %d, v%d" % (VVA, LV, VKA))
    a("v_add_u32 v%d, %d, v%d" % (VQA, LQ, VKA))
    a("s_mov_b32 %s, 0xf149f2ca" % s("big"))
    for g in range(5):
        if g < 4:
            a("s_lshl_b32 %s, %s, 2" % (s("t1"), s("blk")))
            a("s_add_u32 %s, %s, %s" % (s("t1"), s("t1"), s("wave")))
            a("s_cmp_lt_u32 %s, %d" % (s("t1"), 4 - g))
            a("s_cselect_b32 %s, 0, 0x3f803f80" % s("t1"))
        for r in range(4):
            a("v_mov_b32 v%d, %s" % (ONES + 4 * g + r, s("t1") if g < 4 else "0x3f803f80"))
    a("v_bfe_u32 v27, v%d, 4, 4" % VL16)
    a("v_lshrrev_b32 v28, 8, v%d" % VL16)
    a("v_lshlrev_b32 v28, 2, v28")
    a("v_mov_b32 v29, %s" % s("big"))
    for r in range(4):
        a("v_add_u32 v30, %d, v28" % r)
        a("v_cmp_gt_u32 vcc, v30, v27")
        a("v_cndmask_b32 v%d, v29, v%d, vcc" % (CU + r, VZERO))
        a("v_cndmask_b32 v%d, 0, v29, vcc" % (CD + r))


def mf16(d, x, y, c):
    return "v_mfma_f32_16x16x32_bf16 %s, %s, %s, %s" % (d, x, y, c)


def att_norm(oa, t, so, off, tag, check=False):
    o = ["v_rcp_f32 v%d, v%d" % (t, oa + 8)]
    if check:
        o.append("v_cmp_ngt_f32 vcc, %s, v%d" % (s("c1"), oa + 8))
    else:
        o.append("s_nop 0")
    for r in range(8):
        o.append("v_mul_f32 v%d, v%d, v%d" % (oa + r, oa + r, t))
    if check:
        o.append("s_or_b64 %s, %s, vcc" % (sp("bad"), sp("bad")))
    for r in range(4):
        o.append("v_cvt_pk_bf16_f32 v%d, v%d, v%d" % (oa + r, oa + 2 * r, oa + 2 * r + 1))
    o.append("buffer_store_dwordx4 %s, v%d, %s, %s offen offset:%d sc1 ;%s" % (vr(oa, 4), VL16, sq("sWS"), so, off, tag))
    return o


def attention_fast(e, g2, name):
    a = e.a
    WS = sq("sWS")
    NR = 4
    SR, SD, M0, OA, NM, CM, T = 32, 64, 96, 104, 128, 136, 144

    def qf(n):
        return ar(QA0 + 4 * n, 4) if n < 4 else vr(QF0 + 4 * (n - 4), 4)

    def kreg(n, kt):
        return KA0 + 4 * ((kt + (4 if n >= 4 else 0)) % 20)

    def vreg(n, vp, d):
        return VA0 + 4 * ((2 * vp + d + (4 if n >= 4 else 0)) % 20)

    rd = ["ds_read_b128 %s, v%d offset:%d" % (qf(n), VQA, (16384 if n < 4 else 0) + (n % 4) * 1024) for n in range(8)]
    korder = [16, 17, 18, 19, 0, 1, 2, 3] + list(range(4, 16))
    rd += ["ds_read_b128 %s, v%d offset:%d" % (ar(KA0 + 4 * k, 4), VKA, 16384 + k * 1024) for k in korder]
    e.emit(rd[:16])
    rd_bases(a, VGR, None, 4096, 0)
    a("v_add_u32 v%d, 16384, v%d" % (VL16B, VL16))
    a("s_mov_b64 %s, 0" % sp("bad"))
    a("s_mov_b32 %s, 0x5f800000" % s("c1"))
    e.wait(["kv"])
    e.emit(["buffer_store_dword v%d, v%d, %s, %s offen sc1 ;fl" % (VONE, VZERO, WS, s("fl0"))])
    a("s_waitcnt lgkmcnt(0)")
    e.mark(15)
    rest = rd[16:] + ["ds_read_b128 %s, v%d offset:%d" % (ar(VA0 + 4 * k, 4), VVA, 16384 + k * 1024) for k in range(20)]
    dm = [mf16(vr(SD + 4 * n, 4), ar(kreg(n, 16 + n % 4), 4), qf(n), vr(CD, 4)) for n in range(8)]
    e.emit(riffle(dm, rest[:12]))
    rest = rest[12:]
    st = []
    st += ["v_max3_f32 v%d, v%d, v%d, v%d" % (M0 + n, SD + 4 * n, SD + 4 * n + 1, SD + 4 * n + 2) for n in range(8)]
    st += ["v_max_f32 v%d, v%d, v%d" % (M0 + n, M0 + n, SD + 4 * n + 3) for n in range(8)]
    for sw in ("v_permlane32_swap_b32", "v_permlane16_swap_b32"):
        st += ["v_mov_b32 v%d, v%d" % (T + n, M0 + n) for n in range(8)]
        st += ["%s v%d, v%d" % (sw, M0 + n, T + n) for n in range(8)]
        st += ["v_max_f32 v%d, v%d, v%d" % (M0 + n, M0 + n, T + n) for n in range(8)]
    e.emit(riffle(st, rest))

    def prep(n):
        nm, cm = NM + 4 * (n % 2), CM + 4 * (n % 2)
        return ["v_sub_f32 v%d, 0, v%d" % (nm + r, M0 + n) for r in range(4)] + \
               ["v_sub_f32 v%d, v%d, v%d" % (cm + r, CU + r, M0 + n) for r in range(4)]

    items = [(n, vp) for n in range(8) for vp in range((n % 4) // 2, (n % 4) // 2 + 9)]

    def sreg(i, h):
        return SR + (i % NR) * 8 + 4 * h

    def s_ops(i):
        if i >= len(items):
            return [], []
        n, vp = items[i]
        z = n % 4
        m, v = [], []
        for h in range(2):
            kt = 2 * vp + h
            if kt == z + 16:
                v += ["v_sub_f32 v%d, v%d, v%d" % (sreg(i, h) + r, SD + 4 * n + r, M0 + n) for r in range(4)]
            elif z <= kt < z + 16:
                c = (CM if kt == z else NM) + 4 * (n % 2)
                m.append(mf16(vr(sreg(i, h), 4), ar(kreg(n, kt), 4), qf(n), vr(c, 4)))
        return m, v

    def e_ops(i):
        n, vp = items[i]
        z = n % 4
        o, c = [], []
        p = sreg(i, 0)
        for h in range(2):
            b = sreg(i, h)
            if z <= 2 * vp + h <= z + 16:
                o += ["v_exp_f32 v%d, v%d" % (b + r, b + r) for r in range(4)]
                c += ["v_cvt_pk_bf16_f32 v%d, v%d, v%d" % (p + 2 * h + r, b + 2 * r, b + 2 * r + 1) for r in range(2)]
            else:
                c += ["v_mov_b32 v%d, 0" % (p + 2 * h + r) for r in range(2)]
        return o + c

    def pv_ops(i):
        n, vp = items[i]
        oa = OA + 12 * (n % 2)
        first = vp == (n % 4) // 2
        m = []
        for d in range(3):
            src = ar(vreg(n, vp, d), 4) if d < 2 else vr(ONES + 4 * (vp // 2 if n >= 4 else 4), 4)
            m.append(mf16(vr(oa + 4 * d, 4), src, vr(sreg(i, 0), 4), "0" if first else vr(oa + 4 * d, 4)))
        return m

    o = e.opts
    i_poll, i_get, i_bar = o.get("ipoll", 9), o.get("iget", 16), 28
    side = {}

    def add(i, x):
        side.setdefault(i, []).extend(x)
    for kt in range(16):
        add(max(i_bar, 27 + (kt + 4) // 2 - 1 - 2 + 1), ["ds_read_b128 %s, v%d offset:%d" % (ar(kreg(4, kt), 4), VKA, kt * 1024)])
    for p in range(8):
        add(max(i_bar, 27 + (p + 2) - 1 + 2), ["ds_read_b128 %s, v%d offset:%d" % (ar(vreg(4, p, d), 4), VVA, (2 * p + d) * 1024) for d in range(2)])
    bq = g2.B_upto(g2.t0 + 2)
    for k, x in enumerate(bq):
        add(40 + k, [x])
    a("s_lshl_b32 %s, %s, 12" % (s("m0b"), s("wave")))
    e.emit(prep(0))
    a("s_waitcnt lgkmcnt(0)")
    for i in range(2):
        m, v = s_ops(i)
        e.emit(m + v)
    uq = None
    for i in range(len(items)):
        n, vp = items[i]
        k = i % 9
        if i == i_poll:
            e.emit(["buffer_load_dword v%d, v%d, %s, %s offen sc1 ;pollh" % (VFLAG, VL4, WS, s("fl1"))])
        if i == i_get:
            e.wait(["pollh"])
            a("s_cmp_eq_u32 %s, 0" % s("blk"))
            a("s_cselect_b32 %s, 0, 3" % s("msk"))
            e.spin(name + "_sh", VFLAG, VL4, s("fl1"))
            for part, base in ((0, LK), (1, LV)):
                a("s_add_u32 m0, %s, %d" % (s("m0b"), base))
                a("s_add_u32 %s, %s, %s" % (s("t0"), s("m0b"), s("hal")))
                if part:
                    a("s_add_u32 %s, %s, 16384" % (s("t0"), s("t0")))
                for kk in range(4):
                    e.emit(["buffer_load_dwordx4 v%d, %s, %s offen offset:%d sc1 lds ;halo" % (VL16, WS, s("t0"), kk * 1024)])
        if i == i_bar:
            e.wait(["halo"])
            a("s_barrier")
        if i_bar < i <= 40:
            a("s_waitcnt lgkmcnt(0)")
        if i == 48:
            e.emit(["buffer_load_dword v%d, v%d, %s, %s offen sc1 ;pollH" % (VFLAG, VL4, WS, s("hfr"))])
        if i == 56:
            e.wait(["pollH"])
            a("s_mov_b32 %s, %s" % (s("msk"), s("hmask")))
            e.spin(name + "_sH", VFLAG, VL4, s("hfr"))
            for kk, x in enumerate(g2.U_upto(g2.t0 + min(4, g2.UD))):
                add(56 + kk, [x])
        sm, sv = s_ops(i + 2)
        valu = e_ops(i) + sv
        if k == 5 and n < 7:
            valu += prep(n + 1)
        if k == 2 and n > 0:
            valu += att_norm(OA + 12 * ((n - 1) % 2), T, s("o%d" % ((n - 1) // 4)), ((n - 1) % 4) * 1024, "o", True)
        other = side.pop(i, []) + sm + (pv_ops(i - 1) if i else [])
        e.emit(riffle(valu, other))
        if k == 8:
            e.mark(16 + n)
    assert not side, side.keys()
    e.emit(pv_ops(len(items) - 1))
    e.emit(att_norm(OA + 12, T, s("o1"), 3072, "o", True))
    a("s_cmp_lg_u64 %s, 0" % sp("bad"))
    a("s_cbranch_scc1 %s_exact" % name)
    a.lab(name + "_attdone")


def attention_exact(e, name):
    a = e.a
    SB = [32, 104]
    CG, CX, OA, T = 176, 192, 196, 220
    a.lab(name + "_exact")
    a("s_mov_b32 %s, 0" % s("ctr"))
    for r in (VKA, VVA, VQA):
        a("v_add_u32 v%d, 16384, v%d" % (r, r))
    a("s_mov_b32 %s, %s" % (s("t2"), s("o0")))
    a.lab(name + "_exl")
    for z in range(4):
        a("ds_read_b128 %s, v%d offset:%d" % (ar(QA0 + 4 * z, 4), VQA, z * 1024))
    for k in range(20):
        a("ds_read_b128 %s, v%d offset:%d" % (ar(KA0 + 4 * k, 4), VKA, k * 1024))
        a("ds_read_b128 %s, v%d offset:%d" % (ar(VA0 + 4 * k, 4), VVA, k * 1024))
    for g in range(4):
        a("s_lshl_b32 %s, %s, 2" % (s("t1"), s("blk")))
        a("s_add_u32 %s, %s, %s" % (s("t1"), s("t1"), s("wave")))
        a("s_cmp_lt_u32 %s, %d" % (s("t1"), 4 - g))
        a("s_cselect_b32 %s, %s, 0" % (s("t1"), s("big")))
        a("s_cmp_eq_u32 %s, 0" % s("ctr"))
        a("s_cselect_b32 %s, 0, %s" % (s("t1"), s("t1")))
        for r in range(4):
            a("v_mov_b32 v%d, %s" % (CG + 4 * g + r, s("t1")))
    for r in range(4):
        a("v_min_f32 v%d, v%d, v%d" % (CX + r, CU + r, CG + r))
    a("s_waitcnt lgkmcnt(0)")

    def sreg(z, kt):
        return SB[0] + (kt - (z // 2) * 2) * 4
    for z in range(4):
        for kt in range(z, z + 17):
            cc = vr(CX, 4) if kt == z else vr(CD, 4) if kt == z + 16 else vr(CG + 4 * (kt // 4), 4) if kt < 16 else "0"
            a(mf16(vr(sreg(z, kt), 4), ar(KA0 + 4 * kt, 4), ar(QA0 + 4 * z, 4), cc))
        rs = [sreg(z, kt) + r for kt in range(z, z + 17) for r in range(4)]
        a("v_max_f32 v%d, v%d, v%d" % (T, rs[0], rs[1]))
        for k in range(2, 68, 2):
            a("v_max3_f32 v%d, v%d, v%d, v%d" % (T, T, rs[k], rs[k + 1]))
        for sw in ("v_permlane32_swap_b32", "v_permlane16_swap_b32"):
            a("v_mov_b32 v%d, v%d" % (T + 1, T))
            a("%s v%d, v%d" % (sw, T, T + 1))
            a("v_max_f32 v%d, v%d, v%d" % (T, T, T + 1))
        for r in rs:
            a("v_sub_f32 v%d, v%d, v%d" % (r, r, T))
        for r in rs:
            a("v_exp_f32 v%d, v%d" % (r, r))
        for vp in range(z // 2, z // 2 + 9):
            p = sreg(z, 2 * vp)
            for h in range(2):
                b = sreg(z, 2 * vp + h)
                for r in range(2):
                    if z <= 2 * vp + h <= z + 16:
                        a("v_cvt_pk_bf16_f32 v%d, v%d, v%d" % (p + 2 * h + r, b + 2 * r, b + 2 * r + 1))
                    else:
                        a("v_mov_b32 v%d, 0" % (p + 2 * h + r))
        for vp in range(z // 2, z // 2 + 9):
            for d in range(3):
                src = ar(VA0 + (2 * vp + d) * 4, 4) if d < 2 else vr(ONES + 16, 4)
                a(mf16(vr(OA + 4 * d, 4), src, vr(sreg(z, 2 * vp), 4), "0" if vp == z // 2 else vr(OA + 4 * d, 4)))
        for x in att_norm(OA, T + 2, s("t2"), z * 1024, "o"):
            a(x.split(";")[0])
    for r in (VKA, VVA, VQA):
        a("v_subrev_u32 v%d, 16384, v%d" % (r, r))
    a("s_mov_b32 %s, %s" % (s("t2"), s("o1")))
    a("s_add_u32 %s, %s, 1" % (s("ctr"), s("ctr")))
    a("s_cmp_lt_u32 %s, 2" % s("ctr"))
    a("s_nop 4")
    a("s_cbranch_scc1 %s_exl" % name)
    a("s_branch %s_attdone" % name)


def gen_fused(a, name, opts):
    e = Em(a, opts)
    kernel_begin(a, name)
    a("s_cmp_ge_u32 s2, 256")
    a("s_cbranch_scc1 %s_end" % name)
    a("s_load_dwordx2 %s, s[0:1], %d" % (sp("ws"), KA["ws"]))
    mix = opts.get("mix")
    a("s_and_b32 %s, s2, %d" % (s("t0"), 8 if mix else 1))
    a("s_cmp_eq_u32 %s, 0" % s("t0"))
    a("s_cselect_b32 %s, %d, %d" % (s("t1"), KA["w1"], KA["wqkv"]))
    a("s_load_dwordx2 %s, s[0:1], %s" % (sp("p5"), s("t1")))
    a("s_load_dwordx2 %s, s[0:1], %d" % (sp("spm"), KA["b1"]))
    a("s_load_dwordx2 %s, s[0:1], %d" % (sp("p0"), KA["x"]))
    a("s_load_dwordx2 %s, s[0:1], %d" % (sp("p1"), KA["wo"]))
    a("s_load_dwordx2 %s, s[0:1], %d" % (sp("p2"), KA["w2"]))
    a("s_load_dwordx2 %s, s[0:1], %d" % (sp("p3"), KA["b2"]))
    a("s_load_dwordx2 %s, s[0:1], %d" % (sp("p4"), KA["out"]))
    a("v_lshrrev_b32 v27, 6, v0")
    a("v_and_b32 v28, 63, v0")
    a("v_readfirstlane_b32 %s, v27" % s("wave"))
    a("v_lshlrev_b32 v%d, 4, v28" % VL16)
    a("v_lshlrev_b32 v%d, 2, v28" % VL4)
    a("v_mov_b32 v%d, 1" % VONE)
    a("v_mov_b32 v%d, 0" % VZERO)
    a("s_mov_b32 %s, 0" % s("msk", 1))
    a("s_mov_b32 %s, 0" % s("offA"))
    a("s_mov_b32 %s, 0" % s("offB"))
    g2 = G2(e, name + "_g2")
    WS = sq("sWS")
    a("s_cbranch_scc0 %s_b" % name)

    def common_after_issue():
        g2.scalar_setup()
        g2.srds()
        g2.lane_setup_early()

    def warm():
        a("s_getpc_b64 %s" % sp("spm"))
        a.lab(name + "_pc%d" % len(a.l))
        lab = a.l[-1][:-1]
        a("s_sub_u32 %s, %s, %s-%s" % (s("spm"), s("spm"), lab, name))
        a("s_subb_u32 %s, %s, 0" % (s("spm", 1), s("spm", 1)))
        srd(a, "sCode", S["spm"], "%s_end-%s" % (name, name))
        a("s_lshr_b32 %s, s2, 3" % s("t0"))
        a("s_lshl_b32 %s, %s, 2" % (s("t0"), s("t0")))
        a("s_add_u32 %s, %s, %s" % (s("t0"), s("t0"), s("wave")))
        a("s_lshl_b32 %s, %s, 10" % (s("cof"), s("t0")))
        if opts.get("nowarm"):
            return []
        return ["buffer_load_dwordx4 a[252:255], v%d, %s, %s offen ;warm" % (VL16, sq("sCode"), s("cof"))]

    def mall_setup():
        a("s_lshl_b32 %s, %s, 4" % (s("t0"), s("blk")))
        a("s_add_u32 %s, %s, %s" % (s("t0"), s("t0"), s("nt")))
        a("s_lshl_b32 %s, %s, 2" % (s("t0"), s("t0")))
        a("s_add_u32 %s, %s, %s" % (s("t0"), s("t0"), s("wave")))
        a("s_sub_u32 %s, %s, 360" % (s("t1"), s("t0")))
        a("s_cmp_lt_u32 %s, 360" % s("t0"))
        a("s_cselect_b32 %s, %s, %s" % (s("t0"), s("t0"), s("t1")))
        a("s_cselect_b32 %s, %s, %s" % (s("sAux"), s("sW2"), s("sWo")))
        a("s_cselect_b32 %s, %s, %s" % (s("sAux", 1), s("sW2", 1), s("sWo", 1)))
        a("s_cselect_b32 %s, %s, %s" % (s("sAux", 2), s("sW2", 2), s("sWo", 2)))
        a("s_mov_b32 %s, 0x00020000" % s("sAux", 3))
        a("s_mul_i32 %s, %s, 20480" % (s("sp"), s("t0")))
        a("s_add_u32 %s, %s, 4096" % (s("sp"), s("sp")))
        a("v_mul_u32_u24 v30, 10, v%d" % VL4)
        if opts.get("nomall"):
            return []
        return [("buffer_load_dword a251, v30, %s, %s offen ;pf" % (sq("sAux"), s("sp")), "s_add_u32 %s, %s, 2560" % (s("sp"), s("sp")))]

    g = G1(e, name + "_w1", ["F", "F", "F", "H"], 7168, 4, 8, opts.get("Ta", 5), [k * 16384 for k in range(8)])
    if mix:
        a("s_and_b32 %s, s2, 1" % s("blk"))
        a("s_lshl_b32 %s, %s, 2" % (s("blk"), s("blk")))
        a("s_bfe_u32 %s, s2, 0x20004" % s("t0"))
        a("s_add_u32 %s, %s, %s" % (s("blk"), s("blk"), s("t0")))
        a("s_bfe_u32 %s, s2, 0x20001" % s("nt"))
        a("s_lshl_b32 %s, %s, 2" % (s("nt"), s("nt")))
        a("s_lshr_b32 %s, s2, 6" % s("t0"))
        a("s_add_u32 %s, %s, %s" % (s("nt"), s("nt"), s("t0")))
    else:
        a("s_bfe_u32 %s, s2, 0x10001" % s("blk"))
        a("s_lshl_b32 %s, %s, 2" % (s("blk"), s("blk")))
        a("s_bfe_u32 %s, s2, 0x20003" % s("t0"))
        a("s_add_u32 %s, %s, %s" % (s("blk"), s("blk"), s("t0")))
        a("s_bfe_u32 %s, s2, 0x10002" % s("nt"))
        a("s_lshl_b32 %s, %s, 3" % (s("nt"), s("nt")))
        a("s_lshr_b32 %s, s2, 5" % s("t0"))
        a("s_add_u32 %s, %s, %s" % (s("nt"), s("nt"), s("t0")))
    a("s_mul_i32 %s, %s, 448" % (s("t1"), s("nt")))
    a("s_and_b32 %s, %s, 1" % (s("odd"), s("nt")))
    a("s_lshl_b32 %s, %s, 6" % (s("seg0"), s("odd")))
    a("s_add_u32 %s, %s, %s" % (s("seg0"), s("seg0"), s("t1")))
    a("s_cmp_eq_u32 %s, 0" % s("odd"))
    a("s_cselect_b32 %s, 384, 0" % s("seg3"))
    a("s_add_u32 %s, %s, %s" % (s("seg3"), s("seg3"), s("t1")))
    dma_full(a, 30, 7168)
    for si in range(3):
        a("s_add_u32 %s, %s, %d" % (s("t0"), s("seg0"), 4096 - si * 1024 + si * 128))
        a("v_add_u32 v%d, %s, v30" % (VB + si, s("t0")))
    dma_half(a, 30, 7168)
    a("s_add_u32 %s, %s, %d" % (s("t0"), s("seg3"), 4096 - 3072))
    a("v_add_u32 v%d, %s, v30" % (VB + 3, s("t0")))
    a("s_lshl_b32 %s, %s, 12" % (s("m0b"), s("wave")))
    a("v_add_u32 v%d, %s, v%d" % (VA1, s("m0b"), VL16))
    a("v_lshrrev_b32 v%d, 8, v%d" % (VA2, VL16))
    a("v_lshlrev_b32 v%d, 3, v%d" % (VA2, VA2))
    a("s_lshl_b32 %s, %s, 19" % (s("t1"), s("blk")))
    a("s_waitcnt lgkmcnt(0)")
    a("s_sub_u32 %s, %s, 4096" % (s("p5"), s("p5")))
    a("s_subb_u32 %s, %s, 0" % (s("p5", 1), s("p5", 1)))
    srd(a, "sB", S["p5"], str(1024 * 7168 + 4096))
    a("s_add_u32 %s, %s, %s" % (s("t2"), s("ws"), s("t1")))
    a("s_addc_u32 %s, %s, 0" % (s("t3"), s("ws", 1)))
    srd(a, "sA", S["t2"], str(512 << 10))
    srd(a, "sAux", S["spm"], "7168")
    def bias_loads():
        for j in range(14):
            e.emit(["buffer_load_dwordx2 %s, v%d, %s, %s offen offset:%d ;bias" % (vr(g.acc(3, j) + 2, 2), VA2, sq("sAux"), s("seg0") if j < 12 else s("seg3"), (j % 12) * 32)])
    g.prologue(bias_loads)
    srd(a, "sWS", S["ws"], str(256 << 20))
    e.mark(0)
    rd_bases(a, VRD, VRD + 4, g.REG, 0)
    for r in range(6):
        a("v_add_u32 v%d, %d, v%d" % (VRDH + r, g.HI, VRD + r))
    common_after_issue()
    a("s_mov_b32 %s, 0xffff0000" % s("c0"))
    e.wait(["bias"])
    for j in range(14):
        b = g.acc(3, j)
        a("v_lshlrev_b32 v%d, 16, v%d" % (b, b + 2))
        a("v_and_b32 v%d, %s, v%d" % (b + 1, s("c0"), b + 2))
        a("v_lshlrev_b32 v%d, 16, v%d" % (b + 2, b + 3))
        a("v_and_b32 v%d, %s, v%d" % (b + 3, s("c0"), b + 3))
    wm = warm()
    ex = mall_setup()
    a("s_mul_i32 %s, %s, 112" % (s("t0"), s("blk")))
    a("s_mul_i32 %s, %s, 7" % (s("t1"), s("nt")))
    a("s_add_u32 %s, %s, %s" % (s("t0"), s("t0"), s("t1")))
    a("s_add_u32 %s, %s, %s" % (s("o0"), s("t0"), s("odd")))
    a("s_cmp_eq_u32 %s, 0" % s("odd"))
    a("s_cselect_b32 %s, 6, 0" % s("o1"))
    a("s_add_u32 %s, %s, %s" % (s("o1"), s("o1"), s("t0")))
    for k in ("o0", "o1"):
        a("s_lshl_b32 %s, %s, 14" % (s(k), s(k)))
        a("s_add_u32 %s, %s, %d" % (s(k), s(k), L.H))
    a("s_lshl_b32 %s, %s, 2" % (s("fl0"), s("blk")))
    a("s_add_u32 %s, %s, %s" % (s("fl0"), s("fl0"), s("wave")))
    a("s_lshl_b32 %s, %s, 4" % (s("fl0"), s("fl0")))
    a("s_add_u32 %s, %s, %s" % (s("fl0"), s("fl0"), s("nt")))
    flagaddr(a, s("fl0"), s("fl0"), L.HF, s("t0"))
    groups = []
    for u in range(7):
        units = []
        for i in range(4):
            p, q = g.acc(i, 2 * u), g.acc(i, 2 * u + 1)
            ep = ["v_mul_f32 v%d, v%d, abs(v%d)" % (b + r, b + r, b + r) for b in (p, q) for r in range(4)]
            ep += ["v_cvt_pk_bf16_f32 v%d, v%d, v%d" % x for x in ((p, p, p + 1), (p + 1, p + 2, p + 3), (p + 2, q, q + 1), (p + 3, q + 2, q + 3))]
            ep += ["v_pk_max_i16 v%d, v%d, 0" % (p + r, p + r) for r in range(4)]
            ep += ["buffer_store_dwordx4 %s, v%d, %s, %s offen offset:%d sc1 ;h" % (vr(p, 4), VA1, WS, s("o0") if u < 6 else s("o1"), i * 1024)]
            if i == 3 and u < 5:
                ep += ["s_add_u32 %s, %s, 16384" % (s("o0"), s("o0"))]
            units.append(([(i, 2 * u), (i, 2 * u + 1)], ep))
        groups.append(([2 * u, 2 * u + 1], units))

    def extra_a(t):
        o = []
        if t % 8 == 1: o += wm
        if t % 2 == 0 and 8 <= t < 24: o += ex
        return o
    g.run("bias", extra_a, groups)
    a("v_add_u32 v%d, 16384, v%d" % (VL16B, VL16))
    e.mark(3)
    if opts.get("wbl2"):
        a("s_waitcnt vmcnt(0)")
        a("buffer_wbl2 sc1")
    a("s_waitcnt vmcnt(0) lgkmcnt(0)")
    e.q.q = []
    e.emit(["buffer_store_dword v%d, v%d, %s, %s offen sc1 ;fl" % (VONE, VZERO, WS, s("fl0"))])
    e.mark(4)
    a("s_barrier")
    g2.start(-g2.asym)
    e.emit(["s_nop 0"] + g2.B_upto(g2.t0 + g2.BD))
    g2.lane_setup_late()
    a("s_mov_b32 %s, %s" % (s("msk"), s("hmask")))
    a("s_cmp_lg_u32 %s, 0" % s("wave"))
    a("s_cbranch_scc1 %s_aH_ok" % name)
    e.spin(name + "_aH", VFLAG, VL4, s("hfr"), first_loaded=False)
    a("s_barrier")
    e.mark(5)
    e.emit(g2.U_upto(g2.t0 + g2.UD))
    a("s_mov_b32 %s, -1" % s("msk"))
    a("s_mov_b32 %s, 0x40000000" % s("seg0"))
    a("s_mov_b32 %s, 0x40000000" % s("seg3"))
    g2.first_reads()
    for t in range(-g2.asym, g2.asym):
        g2.macro(t)
    qa = list(e.q.q)
    sta = (g2.nextu, g2.nextb)
    a("s_branch %s_g2" % name)

    a.lab(name + "_b")
    e.q.q = []
    g2.start(g2.asym)
    g = G1(e, name + "_qkv", ["F", "H"], 6144, 8, 6, 3, [LRING + k * 8192 for k in range(4)] + [0, 8192], vfrags=(4, 5))
    if mix:
        a("s_and_b32 %s, s2, 1" % s("blk"))
        a("s_lshl_b32 %s, %s, 1" % (s("blk"), s("blk")))
        a("s_bfe_u32 %s, s2, 0x10004" % s("t0"))
        a("s_add_u32 %s, %s, %s" % (s("blk"), s("blk"), s("t0")))
        a("s_bfe_u32 %s, s2, 0x20001" % s("nt"))
        a("s_lshl_b32 %s, %s, 3" % (s("nt"), s("nt")))
        a("s_lshr_b32 %s, s2, 5" % s("t0"))
        a("s_add_u32 %s, %s, %s" % (s("nt"), s("nt"), s("t0")))
    else:
        a("s_bfe_u32 %s, s2, 0x10001" % s("blk"))
        a("s_lshl_b32 %s, %s, 1" % (s("blk"), s("blk")))
        a("s_bfe_u32 %s, s2, 0x10003" % s("t0"))
        a("s_add_u32 %s, %s, %s" % (s("blk"), s("blk"), s("t0")))
        a("s_bfe_u32 %s, s2, 0x10002" % s("nt"))
        a("s_lshl_b32 %s, %s, 4" % (s("nt"), s("nt")))
        a("s_lshr_b32 %s, s2, 4" % s("t0"))
        a("s_add_u32 %s, %s, %s" % (s("nt"), s("nt"), s("t0")))
    a("s_lshl_b32 %s, %s, 6" % (s("seg0"), s("nt")))
    dma_full(a, 30, 6144)
    a("v_lshrrev_b32 v28, 2, v28")
    a("v_mul_u32_u24 v28, 1984, v28")
    a("s_add_u32 %s, %s, 4096" % (s("t0"), s("seg0")))
    a("v_add3_u32 v%d, v30, v28, %s" % (VB, s("t0")))
    dma_half(a, 30, 6144)
    a("s_add_u32 %s, %s, %d" % (s("t0"), s("seg0"), 4096 - 1024 + 4096))
    a("v_add_u32 v%d, %s, v30" % (VB + 1, s("t0")))
    a("s_lshl_b32 %s, %s, 11" % (s("m0b"), s("wave")))
    a("s_and_b32 %s, %s, 1" % (s("t0"), s("wave")))
    a("s_lshl_b32 %s, %s, 13" % (s("t0"), s("t0")))
    a("v_add_u32 v%d, %s, v%d" % (VA1, s("t0"), VL16))
    a("v_add_u32 v%d, 4096, v%d" % (VA2, VA1))
    a("s_lshl_b32 %s, %s, 1" % (s("t1"), s("blk")))
    a("s_lshr_b32 %s, %s, 1" % (s("t0"), s("wave")))
    a("s_add_u32 %s, %s, %s" % (s("t1"), s("t1"), s("t0")))
    a("s_lshl_b32 %s, %s, 19" % (s("t1"), s("t1")))
    a("s_waitcnt lgkmcnt(0)")
    a("s_sub_u32 %s, %s, 4096" % (s("p5"), s("p5")))
    a("s_subb_u32 %s, %s, 0" % (s("p5", 1), s("p5", 1)))
    srd(a, "sB", S["p5"], str(1024 * 6144 + 4096))
    a("s_add_u32 %s, %s, %s" % (s("t2"), s("ws"), s("t1")))
    a("s_addc_u32 %s, %s, 0" % (s("t3"), s("ws", 1)))
    srd(a, "sA", S["t2"], str(512 << 10))
    g.prologue()
    srd(a, "sWS", S["ws"], str(256 << 20))
    e.mark(0)
    rd_bases(a, VRD, VRD + 4, g.REG, 0)
    for r in range(6):
        a("v_add_u32 v%d, %d, v%d" % (VRDH + r, g.HI, VRD + r))
    common_after_issue()
    hd, tb = s("nt"), s("blk")
    a("s_lshl_b32 %s, %s, 2" % (s("t0"), hd))
    a("s_add_u32 %s, %s, %s" % (s("t0"), s("t0"), tb))
    a("s_lshl_b32 %s, %s, 15" % (s("seg1"), s("t0")))
    a("s_add_u32 %s, %s, %d" % (s("seg1"), s("seg1"), L.KVH))
    a("s_sub_u32 %s, %s, 32768" % (s("hal"), s("seg1")))
    a("s_cmp_eq_u32 %s, 0" % tb)
    a("s_cselect_b32 %s, 0x40000000, %s" % (s("hal"), s("hal")))
    a("s_cmp_lt_u32 %s, 2" % s("wave"))
    a("s_cselect_b32 %s, 0x40000000, %s" % (s("seg1"), s("seg1")))
    a("s_lshl_b32 %s, %s, 1" % (s("t0"), s("t0")))
    flagaddr(a, s("fl1"), s("t0"), L.QF, s("t1"))
    a("s_lshl_b32 %s, %s, 2" % (s("t1"), s("wave")))
    a("s_add_u32 %s, %s, %s" % (s("fl0"), s("fl1"), s("t1")))
    a("s_sub_u32 %s, %s, 8" % (s("fl0"), s("fl0")))
    a("s_cmp_lt_u32 %s, 2" % s("wave"))
    a("s_cselect_b32 %s, 0x40000000, %s" % (s("fl0"), s("fl0")))
    a("s_sub_u32 %s, %s, 8" % (s("fl1"), s("fl1")))
    a("s_lshl_b32 %s, %s, 20" % (s("o1"), tb))
    a("s_lshl_b32 %s, %s, 14" % (s("t0"), hd))
    a("s_add_u32 %s, %s, %s" % (s("o1"), s("o1"), s("t0")))
    a("s_lshl_b32 %s, %s, 12" % (s("t0"), s("wave")))
    a("s_add_u32 %s, %s, %s" % (s("o1"), s("o1"), s("t0")))
    a("s_add_u32 %s, %s, %d" % (s("o1"), s("o1"), L.O))
    a("s_add_u32 %s, %s, %d" % (s("o0"), s("o1"), 512 << 10))
    a("s_lshl_b32 %s, %s, 3" % (s("t0"), tb))
    a("s_add_u32 %s, %s, %s" % (s("t0"), s("t0"), s("wave")))
    a("s_lshl_b32 %s, %s, 5" % (s("t0"), s("t0")))
    a("s_add_u32 %s, %s, %s" % (s("t0"), s("t0"), hd))
    flagaddr(a, s("seg0"), s("t0"), L.OF, s("t1"))
    a("s_add_u32 %s, %s, %d" % (s("seg3"), s("seg0"), 4 * L.FS))
    att_consts(a)
    wm = warm()
    a("s_lshl_b32 %s, %s, 13" % (s("t0"), s("wave")))
    a("v_add_u32 v27, %s, v%d" % (s("t0"), VL16))
    a("v_add_u32 v28, %d, v27" % (LV + 16384))
    a("v_add_u32 v29, %d, v27" % LQ)
    a("s_add_u32 %s, %s, 16384" % (s("seg2"), s("seg1")))
    a("s_mov_b32 %s, %s" % (s("c0"), f32(QSCALE)))
    groups = []
    for part in (1, 2, 0):
        units = []
        for z in range(8):
            tiles = [(z, part * 2), (z, part * 2 + 1)] if part < 2 else [(2 * (z // 2), 4 + z % 2), (2 * (z // 2) + 1, 4 + z % 2)]
            p, q = g.acc(*tiles[0]), g.acc(*tiles[1])
            ep = []
            if part == 0:
                ep += ["v_mul_f32 v%d, %s, v%d" % (b + r, s("c0"), b + r) for b in (p, q) for r in range(4)]
            ep += ["v_cvt_pk_bf16_f32 v%d, v%d, v%d" % x for x in ((p, p, p + 1), (p + 1, p + 2, p + 3), (p + 2, q, q + 1), (p + 3, q + 2, q + 3))]
            if part:
                ep += ["buffer_store_dwordx4 %s, v%d, %s, %s offen offset:%d sc1 ;kv" % (vr(p, 4), VA1 + z // 4, WS, s("seg%d" % part), (z % 4) * 1024)]
            if part == 1:
                ep += ["ds_write_b128 v27, %s offset:%d" % (vr(p, 4), LK + 16384 + z * 1024)]
            else:
                ep += ["ds_write_b128 v%d, %s offset:%d" % (28 if part else 29, vr(p, 4), z * 1024)]
            units.append((tiles, ep))
        groups.append(([part * 2, part * 2 + 1], units))
    g.run("zero", lambda t: wm if t % 6 == 1 else [], groups)
    e.wait(["warm"], lgkm=0)
    a("s_barrier")
    attention_fast(e, g2, name)
    e.mark(5)
    g2.lane_setup_late()
    g2.first_reads()
    e.emit(g2.B_upto(g2.t0 + g2.BD) + g2.U_upto(g2.t0 + g2.UD))
    assert sta == (g2.nextu, g2.nextb), (sta, g2.nextu, g2.nextb)
    a.lab(name + "_g2")
    e.q.join([qa, list(e.q.q)])
    g2.body(g2.asym)
    if opts.get("tl") or opts.get("tl2"):
        a("s_waitcnt vmcnt(0)")
        e.mark(11)
        a("s_lshl_b32 %s, s2, 10" % s("t0"))
        a("s_lshl_b32 %s, %s, 8" % (s("t1"), s("wave")))
        a("s_add_u32 %s, %s, %s" % (s("t0"), s("t0"), s("t1")))
        a("s_add_u32 %s, %s, %d" % (s("t0"), s("t0"), L.STAMP + (1 << 20)))
        a("buffer_store_dword v31, v%d, %s, %s offen" % (VL4, WS, s("t0")))
    a("s_endpgm")
    attention_exact(e, name)
    a.lab(name + "_end")
    a("s_endpgm")
    return kd(name, 512, 256, 102)


def build(opts):
    a = A()
    kds = [gen_ln(a, "ln_kernel", opts), gen_fused(a, "fused_kernel", opts)]
    launches = [("ln_kernel", 256 if opts.get("lnpf") else 128, 512, 1024), ("fused_kernel", 256, 256, 163840)]
    a.l, n = hazard.fix(a.l, verbose=bool(opts.get("hv")))
    txt = HEADER
    for k, g, b, lds in launches:
        txt += "; @launch kernel=%s grid=(%d,1,1) block=(%d,1,1) lds=%d\n" % (k, g, b, lds)
    txt += '.amdgcn_target "amdgcn-amd-amdhsa--gfx950"\n.text\n'
    txt += "\n".join(x.strip() if not x.endswith(":") else x for x in a.l) + "\n"
    txt += '.section .rodata,"a"\n'
    for k in kds:
        txt += ".p2align 6\n" + k
    return txt


if __name__ == "__main__":
    opts = {}
    for kv in sys.argv[2:]:
        k, _, v = kv.partition("=")
        try:
            v = int(v) if v else 1
        except ValueError:
            pass
        opts[k] = v
    open(sys.argv[1], "w").write(build(opts))
```
